```python
import torch

def _softmax(x, axis=-1):
    return torch.softmax(x, dim=axis)
def _gelu(x):
    return torch.nn.functional.gelu(x, approximate="tanh")
def _silu(x):
    return torch.nn.functional.silu(x)
def _sigmoid(x):
    return torch.sigmoid(x)
def _layernorm(x, axis=-1, eps=1e-5):
    m = x.mean(dim=axis, keepdim=True)
    v = x.var(dim=axis, keepdim=True, unbiased=False)
    return (x - m) / torch.sqrt(v + eps)
def _scatter_add(tgt, idx, src, axis=0):
    return tgt.clone().index_add_(axis, idx, src)
def _segment_sum(src, seg, n):
    out = torch.zeros((n,) + src.shape[1:], dtype=src.dtype)
    return out.index_add_(0, seg, src)
def _pad(x, pw):
    flat = tuple(v for pair in reversed(pw) for v in pair)
    return torch.nn.functional.pad(x, flat)

kernel_name = 'concat_heads__grouped_kv_mqa__ssm_conv_h3__prompt'

def setup_inputs():

    _w = (lambda a: (lambda t: t.to(torch.bfloat16) if t.is_floating_point() else t)(torch.as_tensor(a)))
    def _A_setup():
        B, S, D, H = 1, 2048, 512, 32
        Dh = D // H
        return {
            "x": _w((lambda *s: torch.randn(*s, dtype=torch.bfloat16) * 0.05)(B, S, D)),
            "wq": _w((lambda *s: torch.randn(*s, dtype=torch.bfloat16) * 0.8)(D, H * Dh)),
            "wk": _w((lambda *s: torch.randn(*s, dtype=torch.bfloat16) * 0.8)(D, Dh)),
            "wv": _w((lambda *s: torch.randn(*s, dtype=torch.bfloat16) * 0.05)(D, Dh)),
            "wo": _w((lambda *s: torch.randn(*s, dtype=torch.bfloat16) * 0.05)(H * Dh, D)),
        }
    _A_in = _A_setup()

    def _B_setup():
        B, S, D = 1, 2048, 512
        ks = 4
        return {
            "q": _w((lambda *s: torch.randn(*s, dtype=torch.bfloat16) * 0.05)(B, S, D)),
            "k": _w((lambda *s: torch.randn(*s, dtype=torch.bfloat16) * 0.2)(B, S, D)),
            "v": _w((lambda *s: torch.randn(*s, dtype=torch.bfloat16) * 0.2)(B, S, D)),
            "shift_k": _w((lambda *s: torch.randn(*s, dtype=torch.bfloat16) * 0.2)(D, ks) * 0.5),
            "ssm_k": _w((lambda *s: torch.randn(*s, dtype=torch.bfloat16) * 0.4)(D, S) * (1.0 / S ** 0.5)),
            "ssm_D": _w((lambda *s: torch.randn(*s, dtype=torch.bfloat16) * 0.2)(D)),
        }
    _B_in = _B_setup()

    return {
        "A_x": _A_in["x"],
        "A_wq": _A_in["wq"],
        "A_wk": _A_in["wk"],
        "A_wv": _A_in["wv"],
        "A_wo": _A_in["wo"],
        "B_q": _B_in["q"],
        "B_k": _B_in["k"],
        "B_v": _B_in["v"],
        "B_shift_k": _B_in["shift_k"],
        "B_ssm_k": _B_in["ssm_k"],
        "B_ssm_D": _B_in["ssm_D"],
    }

def reference(A_x, A_wq, A_wk, A_wv, A_wo, B_q, B_k, B_v, B_shift_k, B_ssm_k, B_ssm_D):
    def _A_ref(x, wq, wk, wv, wo):
        B, S, D = x.shape
        H = 32
        Dh = D // H
        q = (lambda x, *d: x.permute(*d))((x @ wq).reshape(B, S, H, Dh), 0, 2, 1, 3)
        k = x @ wk
        v = x @ wv
        scores = torch.einsum("bhqd,bkd->bhqk", q, k) * (Dh ** -0.5)
        p = _softmax(scores, axis=-1)
        o = torch.einsum("bhqk,bkd->bhqd", p, v)
        return (lambda x, *d: x.permute(*d))(o, 0, 2, 1, 3).reshape(B, S, H * Dh) @ wo

    def _B_ref(q, k, v, shift_k, ssm_k, ssm_D):
        B, S, D = q.shape
        ks = shift_k.shape[-1]
        k_pad = _pad(k, ((0, 0), (ks - 1, 0), (0, 0)))
        k_shift = torch.zeros_like(k)
        for t in range(ks):
            k_shift = k_shift + k_pad[:, t:t + S, :] * shift_k[:, ks - 1 - t][None, None, :]
        kv = k_shift * v
        L = 2 * S
        kv_pad = _pad(kv, ((0, 0), (0, S), (0, 0)))
        kf_pad = _pad(ssm_k, ((0, 0), (0, S)))
        kv_f = (lambda x, axes=(-2,-1): torch.fft.rfft2(x.float(), dim=axes))(kv_pad[:, None, :, :], axes=(1, 2))
        kf_f = (lambda x, axes=(-2,-1): torch.fft.rfft2(x.float(), dim=axes))(kf_pad[:, None, :], axes=(1, 2))
        kf_f = (lambda x, *d: x.permute(*d))(kf_f, 1, 2, 0)
        y_f = kv_f * kf_f[None, :, :, :]
        y = (lambda x, s, axes=(-2,-1): torch.fft.irfft2(x, s=s, dim=axes).to(torch.bfloat16))(y_f, (1, L), axes=(1, 2))[:, 0, :S, :]
        y = y + kv * ssm_D[None, None, :]
        return q * y

    a = _A_ref(A_x, A_wq, A_wk, A_wv, A_wo)
    b = _B_ref(B_q, B_k, B_v, B_shift_k, B_ssm_k, B_ssm_D)
    return torch.concatenate([a, b], axis=-1)
```

```python
import sys, math, struct

NAME = "concat_heads__grouped_kv_mqa__ssm_conv_h3__prompt"
WS_Q = 0
WS_K = 0x200000
WS_V = 0x210000
WS_WO = 0x220000
WS_U = 0x2A0000
U_STRIDE = 4224
WS_END = 0x4B0000
WS_TIME = 0x500000

K1_LDS = 147456
STG = 36864

def f32bits(x):
    return struct.unpack("<I", struct.pack("<f", x))[0]

class Asm:
    def __init__(self):
        self.l = []
    def __call__(self, s):
        for line in s.strip("\n").split("\n"):
            line = line.strip()
            if not line:
                continue
            if line.endswith(":") or line.startswith("."):
                self.l.append(line)
            else:
                self.l.append("    " + line)
    def text(self):
        return "\n".join(self.l) + "\n"

def vr(a, n):
    return f"v[{a}:{a+n-1}]" if n > 1 else f"v{a}"

def srd(a, reg, lo, size, off=None):
    if off is None:
        a(f"s_mov_b32 s{reg}, s{lo}\ns_mov_b32 s{reg+1}, s{lo+1}")
    else:
        a(f"s_add_u32 s{reg}, s{lo}, {off}\ns_addc_u32 s{reg+1}, s{lo+1}, 0")
    a(f"s_mov_b32 s{reg+2}, {size}\ns_mov_b32 s{reg+3}, 0x20000")

def stamp(a, opt, slot, srdreg, idreg, wreg):
    if not opt.get("time"):
        return
    t0, t1 = opt["tv"]
    a(f"""
    s_memrealtime s[90:91]
    s_lshl_b32 s92, s{idreg}, 3
    s_add_u32 s92, s92, s{wreg}
    s_lshl_b32 s92, s92, 6
    s_add_u32 s92, s92, {opt['tbase'] + slot*4}
    s_waitcnt lgkmcnt(0)
    v_mov_b32 v{t0}, s90
    v_mov_b32 v{t1}, s92
    buffer_store_dword v{t0}, v{t1}, s[{srdreg}:{srdreg+3}], 0 offen
    """)

def gen_k1(opt):
    a = Asm()
    a(f"""
.globl k1_kernel
.p2align 8
.type k1_kernel,@function
k1_kernel:
    s_cmp_ge_u32 s2, 256
    s_cbranch_scc1 K1_END
    s_load_dwordx16 s[4:19], s[0:1], 0
    s_load_dwordx2 s[20:21], s[0:1], 64
    s_load_dwordx2 s[22:23], s[0:1], 104
    v_lshrrev_b32 v1, 6, v0
    v_and_b32 v2, 63, v0
    v_readfirstlane_b32 s3, v1
    s_and_b32 s24, s2, 7
    s_lshr_b32 s25, s2, 3
    s_and_b32 s26, s25, 3
    s_lshl_b32 s27, s24, 2
    s_add_u32 s26, s26, s27
    s_lshr_b32 s27, s25, 2
    """)
    a("s_cmp_ge_u32 s3, 4\ns_cbranch_scc1 K1_PRE")
    a(f"""
    v_lshrrev_b32 v3, 4, v2
    v_and_b32 v4, 15, v2
    v_xor_b32 v4, v4, v3
    s_lshl_b32 s28, s26, 6
    s_lshl_b32 s29, s3, 4
    s_add_u32 s28, s28, s29
    s_lshl_b32 s28, s28, 10
    v_lshlrev_b32 v5, 10, v3
    v_add_u32 v5, s28, v5
    """)
    for i in range(4):
        a(f"v_xor_b32 v6, {4*i}, v4\nv_lshl_add_u32 v{8+i}, v6, 4, v5")
        if i:
            a(f"v_add_u32 v{8+i}, {i*3072}, v{8+i}")
    a(f"""
    v_lshrrev_b32 v6, 3, v2
    v_and_b32 v7, 7, v2
    v_and_b32 v3, 1, v3
    v_lshlrev_b32 v3, 2, v3
    v_xor_b32 v7, v7, v3
    s_lshl_b32 s28, s3, 15
    s_lshl_b32 s29, s27, 7
    s_add_u32 s28, s28, s29
    v_lshlrev_b32 v6, 10, v6
    v_lshl_add_u32 v6, v7, 4, v6
    v_add_u32 v12, s28, v6
    v_add_u32 v13, {7168}, v12
    v_add_u32 v14, {2*7168}, v12
    v_add_u32 v15, {3*7168}, v12
    s_lshl_b32 s28, s3, 10
    v_lshlrev_b32 v16, 4, v2
    v_add_u32 v16, s28, v16
    s_lshl_b32 s30, s3, 12
    s_lshl_b32 s31, s3, 10
    """)
    for c in range(1, 4):
        a(f"s_movk_i32 s{60+c}, {256*c}\ns_mov_b32 s{64+c}, {131072*c}\ns_movk_i32 s{68+c}, {4096*c}")
    a("s_waitcnt lgkmcnt(0)")
    srd(a, 32, 4, 2097152)
    srd(a, 36, 6, 524288)
    a("""
    s_cmp_lt_u32 s27, 4
    s_cselect_b32 s40, s8, s10
    s_cselect_b32 s41, s9, s11
    s_mov_b32 s42, 16384
    s_mov_b32 s43, 0x20000
    """)
    srd(a, 44, 22, opt["wsrec"])
    stamp(a, opt, 0, 44, 2, 3)
    for c in range(4):
        sx = f"s{60+c}" if c else "0"
        sw = f"s{64+c}" if c else "0"
        sk = f"s{68+c}" if c else "0"
        a(f"s_add_u32 m0, s30, {c*STG}\ns_nop 0")
        for i in range(4):
            a(f"buffer_load_dwordx4 v{8+i}, s[32:35], {sx} offen offset:{i*1024} lds")
        a(f"s_add_u32 m0, s30, {c*STG+16384}\ns_nop 0")
        for i in range(4):
            a(f"buffer_load_dwordx4 v{12+i}, s[36:39], {sw} offen offset:{i*1024} lds")
        a(f"s_add_u32 m0, s31, {c*STG+32768}\ns_nop 0")
        a(f"buffer_load_dwordx4 v16, s[40:43], {sk} offen lds")
    a(f"""
    s_and_b32 s28, s3, 1
    s_lshr_b32 s29, s3, 1
    v_lshrrev_b32 v3, 5, v2
    v_bfe_u32 v4, v2, 2, 2
    v_lshl_add_u32 v5, v3, 6, v4
    v_lshlrev_b32 v5, 7, v5
    v_lshrrev_b32 v6, 1, v4
    v_xor_b32 v6, s28, v6
    v_lshl_add_u32 v5, v6, 6, v5
    v_bfe_u32 v6, v2, 4, 1
    v_lshl_add_u32 v5, v6, 5, v5
    v_and_b32 v6, 3, v2
    v_lshl_add_u32 v20, v6, 3, v5
    v_add_u32 v21, {2*STG}, v20
    v_and_b32 v4, 31, v2
    s_lshl_b32 s28, s29, 13
    v_lshlrev_b32 v5, 8, v4
    v_add_u32 v5, s28, v5
    v_and_b32 v4, 15, v2
    v_lshlrev_b32 v6, 3, v3
    v_xor_b32 v4, v4, v6
    """)
    for ks in range(8):
        a(f"v_xor_b32 v6, {ks}, v4\nv_lshl_add_u32 v{24+ks}, v6, 4, v5\nv_add_u32 v{32+ks}, {2*STG}, v{24+ks}")
    a(f"""
    s_lshl_b32 s28, s26, 3
    s_lshl_b32 s52, s29, 2
    s_add_u32 s28, s28, s52
    s_lshl_b32 s28, s28, 13
    s_lshl_b32 s52, s27, 10
    s_add_u32 s28, s28, s52
    s_and_b32 s52, s3, 1
    s_lshl_b32 s52, s52, 8
    s_add_u32 s28, s28, s52
    v_bfe_u32 v4, v2, 3, 2
    v_lshlrev_b32 v4, 13, v4
    v_lshl_add_u32 v4, v3, 9, v4
    v_and_b32 v6, 7, v2
    v_lshl_add_u32 v4, v6, 4, v4
    v_add_u32 v22, s28, v4
    """)
    ACC = 48
    FR = 64
    tw = 1 if opt.get("time") else 0
    for c in range(4):
        a(f"s_waitcnt vmcnt({27-9*c})\ns_barrier")
        va = 20 + (c >> 1)
        vb = 24 + 8 * (c >> 1)
        so = (c & 1) * STG
        def rd(ks):
            f = FR + 8 * ks
            a(f"ds_read_b64_tr_b16 v[{f}:{f+1}], v{va} offset:{so+16384+ks*1024}")
            a(f"ds_read_b64_tr_b16 v[{f+2}:{f+3}], v{va} offset:{so+16384+ks*1024+512}")
            a(f"ds_read_b128 v[{f+4}:{f+7}], v{vb+ks} offset:{so}")
        for ks in range(5):
            rd(ks)
        for ks in range(8):
            issued = min(8, 5 + ks)
            a(f"s_waitcnt lgkmcnt({3*(issued-ks-1)})")
            f = FR + 8 * ks
            cc = "0" if (c == 0 and ks == 0) else vr(ACC, 16)
            a(f"v_mfma_f32_32x32x16_bf16 {vr(ACC,16)}, v[{f}:{f+3}], v[{f+4}:{f+7}], {cc}")
            if 5 + ks < 8:
                rd(5 + ks)
    sc = f32bits(0.25 * math.log2(math.e))
    a(f"s_mov_b32 s28, {sc:#x}\ns_nop 7\ns_nop 3")
    for r in range(16):
        a(f"v_mul_f32 v{ACC+r}, s28, v{ACC+r}")
    for r in range(8):
        a(f"v_cvt_pk_bf16_f32 v{FR+r}, v{ACC+2*r}, v{ACC+2*r+1}")
    a(f"buffer_store_dwordx4 v[{FR}:{FR+3}], v22, s[44:47], 0 offen")
    a(f"buffer_store_dwordx4 v[{FR+4}:{FR+7}], v22, s[44:47], 0 offen offset:128")
    if opt.get("time"):
        a("s_waitcnt vmcnt(0)")
    stamp(a, opt, 1, 44, 2, 3)
    a("s_endpgm")
    a("K1_PRE:")
    a(f"""
    s_sub_u32 s28, s3, 4
    v_and_b32 v3, 7, v2
    v_lshrrev_b32 v4, 3, v2
    s_lshl_b32 s29, s24, 7
    s_lshl_b32 s30, s28, 5
    s_add_u32 s29, s29, s30
    v_lshlrev_b32 v5, 2, v3
    v_add_u32 v5, s29, v5
    s_lshl_b32 s30, s25, 16
    v_lshlrev_b32 v6, 13, v4
    v_add3_u32 v8, v5, v6, s30
    v_subrev_u32 v9, 3072, v8
    v_lshlrev_b32 v10, 2, v5
    v_mov_b32 v11, -1
    s_movk_i32 s31, 4096
    s_waitcnt lgkmcnt(0)
    """)
    srd(a, 32, 16, 2097152)
    srd(a, 36, 18, 2097152)
    srd(a, 40, 20, 4096)
    srd(a, 44, 22, opt["wsrec"])
    stamp(a, opt, 0, 44, 2, 3)
    KR = 16
    VRAW = 28
    a("buffer_load_dwordx4 v[12:15], v10, s[40:43], 0 offen")
    for i in range(3):
        a(f"buffer_load_dword v{KR+i}, v9, s[32:35], 0 offen offset:{i*1024}")
    for i in range(8):
        so = "s31" if i >= 4 else "0"
        a(f"buffer_load_dword v{KR+3+i}, v8, s[32:35], {so} offen offset:{(i%4)*1024}")
    for i in range(8):
        so = "s31" if i >= 4 else "0"
        a(f"buffer_load_dword v{VRAW+i}, v8, s[36:39], {so} offen offset:{(i%4)*1024}")
    WOR = 112
    a(f"""
    s_cmp_lg_u32 s3, 6
    s_cbranch_scc1 K1_NOWO1
    s_lshr_b32 s48, s2, 5
    s_bfe_u32 s49, s2, 0x20003
    s_bfe_u32 s50, s2, 0x10002
    s_and_b32 s51, s2, 3
    s_lshl_b32 s52, s48, 3
    s_lshl_b32 s53, s50, 2
    s_add_u32 s52, s52, s53
    s_add_u32 s52, s52, s51
    s_lshl_b32 s52, s52, 13
    s_lshl_b32 s53, s49, 8
    s_add_u32 s52, s52, s53
    v_lshlrev_b32 v11, 2, v2
    v_add_u32 v11, s52, v11
    """)
    srd(a, 56, 12, 524288)
    for i in range(8):
        so = "s31" if i >= 4 else "0"
        a(f"buffer_load_dword v{WOR+i}, v11, s[56:59], {so} offen offset:{(i%4)*1024}")
    a(f"""
    s_lshl_b32 s52, s48, 2
    s_add_u32 s52, s52, s49
    s_lshl_b32 s52, s52, 14
    s_lshl_b32 s53, s50, 10
    s_add_u32 s52, s52, s53
    s_lshl_b32 s53, s51, 8
    s_add_u32 s52, s52, s53
    s_add_u32 s52, s52, {WS_WO}
    v_and_b32 v11, 3, v2
    v_lshlrev_b32 v11, 12, v11
    v_lshrrev_b32 v7, 2, v2
    v_lshl_add_u32 v11, v7, 4, v11
    v_add_u32 v11, s52, v11
    K1_NOWO1:
    """)
    a(f"""
    v_mul_u32_u24 v7, {U_STRIDE//2}, v5
    s_lshl_b32 s30, s25, 7
    s_sub_u32 s30, {WS_U + 4080}, s30
    v_lshlrev_b32 v6, 4, v4
    v_sub_u32 v7, v7, v6
    v_add_u32 v7, s30, v7
    v_add_u32 v10, {U_STRIDE}, v7
    s_mov_b32 s29, 0xffff0000
    """)
    WP = 40
    KP = 48
    VP = 72
    U = 88
    OUT = 104
    a("s_waitcnt vmcnt(0)")
    a(f"""
    v_lshlrev_b32 v{WP+0}, 16, v12
    v_lshlrev_b32 v{WP+1}, 16, v14
    v_and_b32 v{WP+2}, s29, v12
    v_and_b32 v{WP+3}, s29, v14
    v_lshlrev_b32 v{WP+4}, 16, v13
    v_lshlrev_b32 v{WP+5}, 16, v15
    v_and_b32 v{WP+6}, s29, v13
    v_and_b32 v{WP+7}, s29, v15
    """)
    for i in range(11):
        a(f"v_lshlrev_b32 v{KP+2*i}, 16, v{KR+i}\nv_and_b32 v{KP+2*i+1}, s29, v{KR+i}")
    for i in range(8):
        a(f"v_lshlrev_b32 v{VP+2*i}, 16, v{VRAW+i}\nv_and_b32 v{VP+2*i+1}, s29, v{VRAW+i}")
    for j in range(4):
        for t in range(8):
            k = KP + 2 * (t + 3 - j)
            w = WP + 2 * j
            u = U + 2 * t
            if j == 0:
                a(f"v_pk_mul_f32 v[{u}:{u+1}], v[{k}:{k+1}], v[{w}:{w+1}]")
            else:
                a(f"v_pk_fma_f32 v[{u}:{u+1}], v[{k}:{k+1}], v[{w}:{w+1}], v[{u}:{u+1}]")
    for t in range(8):
        u = U + 2 * t
        a(f"v_pk_mul_f32 v[{u}:{u+1}], v[{u}:{u+1}], v[{VP+2*t}:{VP+2*t+1}]")
    for c in range(2):
        for d in range(4):
            a(f"v_cvt_pk_bf16_f32 v{OUT+4*c+d}, v{U+2*(7-2*d)+c}, v{U+2*(6-2*d)+c}")
    a(f"buffer_store_dwordx4 v[{OUT}:{OUT+3}], v7, s[44:47], 0 offen")
    a(f"buffer_store_dwordx4 v[{OUT+4}:{OUT+7}], v10, s[44:47], 0 offen")
    a(f"""
    s_cmp_lg_u32 s25, 0
    s_cbranch_scc1 K1_NOPAD
    v_mov_b32 v12, 0
    v_mov_b32 v13, 0
    v_mov_b32 v14, 0
    v_mov_b32 v15, 0
    buffer_store_dwordx4 v[12:15], v7, s[44:47], 0 offen offset:128
    buffer_store_dwordx4 v[12:15], v10, s[44:47], 0 offen offset:128
    K1_NOPAD:
    s_cmp_eq_u32 s3, 7
    s_cbranch_scc1 K1_KV
    s_cmp_lg_u32 s3, 6
    s_cbranch_scc1 K1_PEND
    s_mov_b32 s48, 0x05040100
    s_mov_b32 s49, 0x07060302
    """)
    for i in range(4):
        d0 = 4 * (i % 2) + 2 * (i // 2)
        a(f"v_perm_b32 v{120+i}, v{WOR+d0+1}, v{WOR+d0}, s48")
        a(f"v_perm_b32 v{124+i}, v{WOR+d0+1}, v{WOR+d0}, s49")
    a("buffer_store_dwordx4 v[120:123], v11, s[44:47], 0 offen")
    a("buffer_store_dwordx4 v[124:127], v11, s[44:47], 0 offen offset:2048")
    a("K1_PEND:")
    if opt.get("time"):
        a("s_waitcnt vmcnt(0)")
    stamp(a, opt, 1, 44, 2, 3)
    a("s_endpgm")
    a("K1_KV:")
    a(f"""
    v_lshrrev_b32 v3, 4, v2
    v_bfe_u32 v4, v2, 2, 2
    v_lshl_add_u32 v5, v3, 3, v4
    v_lshlrev_b32 v5, 5, v5
    v_and_b32 v6, 3, v2
    v_lshl_add_u32 v20, v6, 3, v5
    v_add_u32 v20, 32768, v20
    v_add_u32 v21, {2*STG}, v20
    v_and_b32 v4, 15, v2
    s_and_b32 s28, s27, 3
    s_lshl_b32 s29, s28, 12
    v_lshlrev_b32 v5, 8, v4
    v_add_u32 v5, s29, v5
    v_xor_b32 v6, v4, v3
    """)
    for k in range(4):
        a(f"v_xor_b32 v8, {4*k}, v6\nv_lshl_add_u32 v{24+k}, v8, 4, v5\nv_add_u32 v{28+k}, {2*STG}, v{24+k}")
    a("s_cmp_ge_u32 s27, 4\ns_cbranch_scc1 K1_V")
    for which in "KV":
        if which == "V":
            a("K1_V:")
        if which == "K":
            a(f"""
            s_lshl_b32 s29, s26, 11
            s_lshr_b32 s30, s28, 1
            s_lshl_b32 s30, s30, 10
            s_add_u32 s29, s29, s30
            s_and_b32 s30, s28, 1
            s_lshl_b32 s30, s30, 8
            s_add_u32 s29, s29, s30
            s_add_u32 s29, s29, {WS_K}
            v_and_b32 v8, 1, v3
            v_lshlrev_b32 v8, 9, v8
            v_lshl_add_u32 v8, v4, 4, v8
            v_lshrrev_b32 v9, 1, v3
            v_lshl_add_u32 v8, v9, 3, v8
            v_add_u32 v22, s29, v8
            """)
        else:
            a(f"""
            s_lshl_b32 s29, s26, 2
            s_add_u32 s29, s29, s28
            s_lshl_b32 s29, s29, 9
            s_add_u32 s29, s29, {WS_V}
            v_lshrrev_b32 v8, 1, v3
            v_lshlrev_b32 v8, 8, v8
            v_lshl_add_u32 v8, v4, 4, v8
            v_and_b32 v9, 1, v3
            v_lshl_add_u32 v8, v9, 3, v8
            v_add_u32 v22, s29, v8
            """)
        for c in range(4):
            a("s_barrier")
            va = 20 + (c >> 1)
            vb = 24 + 4 * (c >> 1)
            so = (c & 1) * STG
            for k in range(4):
                f = 64 + 8 * k
                a(f"ds_read_b64_tr_b16 v[{f}:{f+1}], v{va} offset:{so+k*1024}")
                a(f"ds_read_b64_tr_b16 v[{f+2}:{f+3}], v{va} offset:{so+k*1024+128}")
                a(f"ds_read_b128 v[{f+4}:{f+7}], v{vb+k} offset:{so}")
            for k in range(4):
                f = 64 + 8 * k
                a(f"s_waitcnt lgkmcnt({9-3*k})")
                cc = "0" if (c == 0 and k == 0) else "v[48:51]"
                if which == "K":
                    a(f"v_mfma_f32_16x16x32_bf16 v[48:51], v[{f}:{f+3}], v[{f+4}:{f+7}], {cc}")
                else:
                    a(f"v_mfma_f32_16x16x32_bf16 v[48:51], v[{f+4}:{f+7}], v[{f}:{f+3}], {cc}")
        a("""
        s_nop 7
        v_cvt_pk_bf16_f32 v52, v48, v49
        v_cvt_pk_bf16_f32 v53, v50, v51
        buffer_store_dwordx2 v[52:53], v22, s[44:47], 0 offen
        """)
        if opt.get("time"):
            a("s_waitcnt vmcnt(0)")
        stamp(a, opt, 1, 44, 2, 3)
        a("s_endpgm")
    a("K1_END:\ns_endpgm")
    return a.text()

def kdesc(name, vgpr, sgpr=102):
    return f""".p2align 6
.amdhsa_kernel {name}
  .amdhsa_next_free_vgpr {vgpr}
  .amdhsa_next_free_sgpr {sgpr}
  .amdhsa_accum_offset {vgpr}
  .amdhsa_group_segment_fixed_size 0
  .amdhsa_kernarg_size 112
  .amdhsa_user_sgpr_count 2
  .amdhsa_user_sgpr_kernarg_segment_ptr 1
  .amdhsa_system_sgpr_workgroup_id_x 1
.end_amdhsa_kernel
"""

PSLOT = 2304
PSTEP = 4 * PSLOT
HREG0 = 8 * PSTEP
HT_SZ = 7680
UT_SZ = 9216
HREG = HT_SZ + UT_SZ
FLAGS = HREG0 + 4 * HREG
K2_LDS = FLAGS + 5 * 256
SENT = 0xBF800000

S0 = 16; ACC = 48; KB = 64; VB = 128
QA = 8; QB = 12
VIDX = 2; VZ = 4
VOFF = 0; VPW = 1; VPL = 3

def att_ops(i, qreg):
    S = S0 + 16 * (i % 2); Sn = S0 + 16 * ((i + 1) % 2)
    E = [f"v_exp_f32 v{S+j}, v{S+j}" for j in range(16)]
    kn = KB + 4 * ((i + 1) % 16); ip = (i - 1) % 16
    qk = f"v_mfma_f32_32x32x16_bf16 v[{Sn}:{Sn+15}], v[{kn}:{kn+3}], v[{qreg}:{qreg+3}], 0"
    pva = f"v_smfmac_f32_32x32x32_bf16 v[{ACC}:{ACC+15}], v[{VB+8*i}:{VB+8*i+3}], v[{S}:{S+7}], v{VIDX}"
    pvb = f"v_smfmac_f32_32x32x32_bf16 v[{ACC}:{ACC+15}], v[{VB+8*ip+4}:{VB+8*ip+7}], v[{Sn+8}:{Sn+15}], v{VIDX}"
    return E, qk, pva, pvb

ZERO_ACC = f"v_mfma_f32_32x32x8_bf16 v[{ACC}:{ACC+15}], v[{VZ}:{VZ+1}], v[{VZ}:{VZ+1}], 0"

def part_writes(step):
    o = (step % 4) * PSTEP
    return [f"ds_write_b128 v{VPW}, v[{ACC}:{ACC+3}] offset:{o}",
            f"ds_write_b128 v{VPW}, v[{ACC+4}:{ACC+7}] offset:{o+1024}",
            f"ds_write_b32 v{VPL}, v{ACC+8} offset:{o}"]

def gen_k2(opt):
    a = Asm()
    kname = f"{NAME}_kernel"
    a(f"""
.globl {kname}
.p2align 8
.type {kname},@function
{kname}:
    s_cmp_ge_u32 s2, 256
    s_cbranch_scc1 K2_END
    s_load_dwordx2 s[14:15], s[0:1], 104
    s_load_dwordx2 s[4:5], s[0:1], 40
    s_load_dwordx4 s[8:11], s[0:1], 72
    s_load_dwordx2 s[12:13], s[0:1], 88
    v_lshrrev_b32 v1, 6, v0
    v_and_b32 v6, 63, v0
    v_readfirstlane_b32 s3, v1
    s_and_b32 s32, s2, 7
    s_lshr_b32 s33, s2, 3
    s_lshl_b32 s32, s32, 5
    s_add_u32 s32, s32, s33
    s_cmp_ge_u32 s3, 4
    s_cbranch_scc1 K2_HELP
    """)
    a(f"""
    v_lshlrev_b32 v{VOFF}, 4, v6
    v_lshrrev_b32 v7, 5, v6
    v_and_b32 v8, 15, v6
    v_lshl_add_u32 v8, v7, 4, v8
    v_lshlrev_b32 v{VZ}, 4, v8
    s_lshl_b32 s34, s32, 13
    s_lshl_b32 s35, s3, 14
    s_add_u32 s36, s35, {WS_K}
    s_add_u32 s40, s35, {WS_V}
    s_add_u32 s37, s36, 4096
    s_add_u32 s38, s36, 8192
    s_add_u32 s39, s36, 12288
    s_add_u32 s41, s40, 4096
    s_add_u32 s42, s40, 8192
    s_add_u32 s43, s40, 12288
    s_mov_b32 s44, 0x0000ffff
    s_mov_b32 s45, 0x0000ffff
    s_waitcnt lgkmcnt(0)
    """)
    srd(a, 16, 14, opt["wsrec"])
    stamp(a, opt, 0, 16, 2, 3)
    if opt.get("time"):
        a("s_memtime s[58:59]")
    a(f"buffer_load_dwordx4 v[{QA}:{QA+3}], v{VOFF}, s[16:19], s34 offen")
    for g in range(4):
        for t in range(4):
            r = KB + 16 * g + 4 * t
            a(f"buffer_load_dwordx4 v[{r}:{r+3}], v{VOFF}, s[16:19], s{36+g} offen offset:{1024*t}")
        a("s_mov_b64 exec, s[44:45]")
        for t in range(8):
            r = VB + 32 * g + 4 * t
            a(f"buffer_load_dwordx4 v[{r}:{r+3}], v{VZ}, s[16:19], s{40+g} offen offset:{512*t}")
        a("s_mov_b64 exec, -1")
    a(f"buffer_load_dwordx4 v[{QB}:{QB+3}], v{VOFF}, s[16:19], s34 offen offset:1024")
    a(f"""
    v_bfe_u32 v9, v6, 3, 2
    v_and_b32 v10, 7, v6
    v_lshl_add_u32 v10, v9, 4, v10
    v_lshl_add_u32 v10, v7, 3, v10
    """.replace("v9", "v16").replace("v10", "v17"))
    a(f"""
    s_mul_i32 s46, s3, {PSLOT}
    v_lshlrev_b32 v{VPW}, 4, v17
    v_add_u32 v{VPW}, s46, v{VPW}
    v_lshlrev_b32 v{VPL}, 2, v17
    v_add_u32 v{VPL}, s46, v{VPL}
    v_add_u32 v{VPL}, 2048, v{VPL}
    v_mov_b32 v{VIDX}, 0xdddddddd
    v_mov_b32 v{VZ}, 0
    v_mov_b32 v{VZ+1}, 0
    s_mov_b32 s46, 0x3f803f80
    s_mov_b32 s47, 0x3f803f80
    s_not_b64 exec, s[44:45]
    """)
    for r in range(VB, VB + 128, 2):
        a(f"v_mov_b64 v[{r}:{r+1}], s[46:47]")
    a("s_mov_b64 exec, -1\ns_barrier")
    order = ["Q0"]
    for g in range(4):
        order += [f"K{4*g+t}" for t in range(4)] + [f"V{8*g+t}" for t in range(8)]
    order += ["Q1"]
    NL = len(order)
    waited = [NL]
    def need(name):
        n = NL - 1 - order.index(name)
        if n < waited[0]:
            a(f"s_waitcnt vmcnt({n})")
            waited[0] = n
    need("K0")
    a(f"v_mfma_f32_32x32x16_bf16 v[{S0}:{S0+15}], v[{KB}:{KB+3}], v[{QA}:{QA+3}], 0")
    a(ZERO_ACC)
    a("s_nop 7\ns_nop 2")
    pat = opt.get("pat", 4)
    for step in range(8):
        qc = QA if step % 2 == 0 else QB
        qn = QB if step % 2 == 0 else QA
        first = step == 0
        if opt.get("time"):
            a(f"s_memtime s[{60+2*step}:{61+2*step}]")
        for i in range(16):
            E, qk, pva, pvb = att_ops(i, qc if i < 15 else qn)
            E = list(E)
            def w(lst, *names):
                return lst
            pre_qk = []; pre_pva = []; pre_pvb = []
            seq = []
            if pat == 4:
                p1, p2, p3 = 2, 5, 10
            else:
                p1, p2, p3 = 2, 7, 12
            if i == 0 and first:
                seq = E[0:p2] + [("K1",), qk] + E[p2:p3] + [("V0",), pva] + E[p3:]
            elif i == 0:
                W = part_writes(step - 1)
                seq = E[0:2] + [pvb] + E[2:5] + [qk] + E[5:13] + [W[0], E[13], W[1], E[14], W[2], ZERO_ACC, E[15]]
                if step == 4:
                    seq += [f"v_add_u32 v{VPW}, {4*PSTEP}, v{VPW}", f"v_add_u32 v{VPL}, {4*PSTEP}, v{VPL}"]
            elif i == 1 and not first:
                _, _, pva0, _ = att_ops(0, qc)
                seq = E[0:2] + [pva0] + E[2:5] + [pvb] + E[5:8] + [qk] + E[8:12] + [pva] + E[12:]
                if step < 7:
                    seq.append(f"buffer_load_dwordx4 v[{qn}:{qn+3}], v{VOFF}, s[16:19], s34 offen offset:{1024*((step+1)%4)}")
                    if (step + 1) % 4 == 0:
                        seq.insert(-1, "s_add_u32 s34, s34, 4096")
                else:
                    seq.append("s_nop 0")
                seq.append("s_nop 1")
            else:
                wq = []
                if first:
                    wq = [(f"K{i+1}",)] if i < 15 else [("Q1",)]
                elif i == 15 and step < 7:
                    wq = ["s_waitcnt vmcnt(0)"]
                if i == 15 and step == 7:
                    qkl = []
                else:
                    qkl = wq + [qk]
                wb = [(f"V{2*i-1}",)] if first else []
                wa = [(f"V{2*i}",)] if first else []
                seq = E[0:p1] + wb + [pvb] + E[p1:p2] + qkl + E[p2:p3] + wa + [pva] + E[p3:]
            for s in seq:
                if isinstance(s, tuple):
                    need(s[0])
                else:
                    a(s)
    _, _, _, pvb = att_ops(0, QA)
    a("s_nop 1")
    a(pvb)
    a("s_nop 7\ns_nop 3")
    for wr in part_writes(7):
        a(wr)
    if opt.get("time"):
        a("s_memtime s[76:77]")
    stamp(a, opt, 1, 16, 2, 3)
    if opt.get("time"):
        for k in range(9):
            a(f"v_mov_b32 v18, s{60+2*k}\nv_add_u32 v19, 4, v19\nbuffer_store_dword v18, v19, s[16:19], 0 offen")
        a(f"v_mov_b32 v18, s58\nv_add_u32 v19, 4, v19\nbuffer_store_dword v18, v19, s[16:19], 0 offen")
    a("s_waitcnt lgkmcnt(0)\ns_barrier")
    a(f"""
    v_mov_b32 v7, {FLAGS+1024}
    ds_read_b32 v8, v7
    s_waitcnt lgkmcnt(0)
    v_readfirstlane_b32 s48, v8
    s_cmp_eq_u32 s48, 0
    s_cbranch_scc1 K2_END
    """)
    a(f"""
    s_lshl_b32 s34, s32, 13
    v_subrev_u32 v{VPW}, {4*PSTEP}, v{VPW}
    v_subrev_u32 v{VPL}, {4*PSTEP}, v{VPL}
    s_lshl_b32 s49, s3, 8
    v_lshlrev_b32 v7, 2, v6
    v_add_u32 v7, s49, v7
    v_add_u32 v7, {HREG0}, v7
    v_and_b32 v12, 31, v6
    v_lshlrev_b32 v12, 2, v12
    v_add_u32 v12, {HREG0}, v12
    s_mov_b32 s50, 0
    FB_STEP:
    buffer_load_dwordx4 v[{QA}:{QA+3}], v{VOFF}, s[16:19], s34 offen
    v_mov_b32 v13, 0xff800000
    s_waitcnt vmcnt(0)
    """)
    for i in range(16):
        a(f"v_mfma_f32_32x32x16_bf16 v[{S0}:{S0+15}], v[{KB+4*i}:{KB+4*i+3}], v[{QA}:{QA+3}], 0")
        a("s_nop 7\ns_nop 3")
        for j in range(8):
            a(f"v_max3_f32 v13, v{S0+2*j}, v{S0+2*j+1}, v13")
    a(f"""
    ds_write_b32 v7, v13
    s_waitcnt lgkmcnt(0)
    s_barrier
    """)
    for j in range(8):
        a(f"ds_read_b32 v{S0+j}, v12 offset:{128*j}")
    a("s_waitcnt lgkmcnt(0)")
    for j in range(4):
        a(f"v_max3_f32 v13, v{S0+2*j}, v{S0+2*j+1}, v13")
    for j in range(16):
        a(f"v_sub_f32 v{S0+16+j}, 0, v13")
    a("s_nop 1")
    a(ZERO_ACC)
    for i in range(16):
        a(f"v_mfma_f32_32x32x16_bf16 v[{S0}:{S0+15}], v[{KB+4*i}:{KB+4*i+3}], v[{QA}:{QA+3}], v[{S0+16}:{S0+31}]")
        a("s_nop 7\ns_nop 3")
        for j in range(16):
            a(f"v_exp_f32 v{S0+j}, v{S0+j}")
        a("s_nop 1")
        a(f"v_smfmac_f32_32x32x32_bf16 v[{ACC}:{ACC+15}], v[{VB+8*i}:{VB+8*i+3}], v[{S0}:{S0+7}], v{VIDX}")
        a(f"v_smfmac_f32_32x32x32_bf16 v[{ACC}:{ACC+15}], v[{VB+8*i+4}:{VB+8*i+7}], v[{S0+8}:{S0+15}], v{VIDX}")
    a("s_nop 7\ns_nop 3")
    for wr in part_writes(0):
        a(wr)
    a(f"""
    s_add_u32 s34, s34, 1024
    v_add_u32 v{VPW}, {PSTEP}, v{VPW}
    v_add_u32 v{VPL}, {PSTEP}, v{VPL}
    v_add_u32 v7, 1024, v7
    v_add_u32 v12, 1024, v12
    s_add_u32 s50, s50, 1
    s_cmp_lt_u32 s50, 8
    s_cbranch_scc1 FB_STEP
    s_waitcnt lgkmcnt(0)
    s_barrier
    s_endpgm
    """)
    gen_helper(a, opt)
    a("K2_END:\ns_endpgm")
    return a.text()

def gen_helper(a, opt):
    WO = 128
    OA = 96
    CA = 64
    FR = 32
    gap = opt.get("gap", 7)
    def safe(lbl):
        if not opt.get("safe"):
            return ""
        return f"s_sub_u32 s56, s56, 1\ns_cmp_lt_i32 s56, 0\ns_cbranch_scc1 {lbl}"
    a(f"""
    K2_HELP:
    s_setprio {opt.get('hprio', 2)}
    s_sub_u32 s33, s3, 4
    v_lshlrev_b32 v7, 2, v6
    s_mul_i32 s34, s33, {2*PSTEP}
    v_add_u32 v8, s34, v7
    v_mov_b32 v9, {SENT:#x}
    v_mov_b32 v10, 0
    """)
    for k in range(8):
        a(f"ds_write_b32 v8, v9 offset:{k*PSLOT+2048}")
    a(f"""
    s_lshl_b32 s34, s33, 8
    s_add_u32 s34, s34, {FLAGS}
    v_add_u32 v1, s34, v7
    v_add_u32 v8, {FLAGS+1024}, v7
    ds_write_b32 v1, v10
    ds_write_b32 v8, v10
    s_mul_i32 s35, s33, {HREG}
    s_add_u32 s35, s35, {HREG0}
    s_lshr_b32 s36, s33, 1
    s_and_b32 s37, s33, 1
    s_lshl_b32 s38, s32, 1
    s_add_u32 s38, s38, s36
    s_waitcnt lgkmcnt(0)
    s_barrier
    """)
    srd(a, 16, 14, opt["wsrec"])
    a("s_lshl_b32 s39, s38, 12")
    srd(a, 20, 8, 4096, off="s39")
    stamp(a, opt, 0, 16, 2, 3)
    a(f"""
    s_load_dword s40, s[20:21], 0
    s_lshl_b32 s39, s32, 2
    s_load_dword s41, s[10:11], s39
    v_mul_u32_u24 v8, 13108, v6
    v_lshrrev_b32 v8, 16, v8
    v_mul_u32_u24 v9, 5, v8
    v_sub_u32 v9, v6, v9
    v_lshlrev_b32 v8, 6, v8
    v_lshl_add_u32 v8, v9, 4, v8
    s_mov_b32 s42, -1
    s_mov_b32 s43, 0x0fffffff
    s_mov_b64 exec, s[42:43]
    """)
    for k in range(6):
        if k == 5:
            a("s_mov_b64 exec, 0x7ffff")
        a(f"s_add_u32 m0, s35, {2560 + 960*k}\ns_movk_i32 s44, {768*k}")
        a(f"buffer_load_dwordx4 v8, s[20:23], s44 offen lds")
    a("s_mov_b64 exec, -1")
    a(f"""
    s_mul_i32 s44, s38, {U_STRIDE}
    s_lshl_b32 s45, s37, 10
    s_add_u32 s44, s44, s45
    s_add_u32 s44, s44, {WS_U}
    """)
    for k in range(9):
        a(f"""
        v_add_u32 v9, {64*k}, v6
        v_mul_u32_u24 v10, 937, v9
        v_lshrrev_b32 v10, 16, v10
        v_mul_u32_u24 v11, 70, v10
        v_sub_u32 v9, v9, v11
        v_lshlrev_b32 v9, 4, v9
        v_and_b32 v11, 3, v10
        v_lshl_add_u32 v9, v11, 1, v9
        v_lshrrev_b32 v10, 2, v10
        s_add_u32 m0, s35, {HT_SZ + 1024*k}
        v_lshl_add_u32 v9, v10, 11, v9
        """)
        if k == 8:
            a("s_mov_b32 s43, 0xffff\ns_mov_b64 exec, s[42:43]")
        a("buffer_load_dwordx4 v9, s[16:19], s44 offen lds")
    a("s_mov_b64 exec, -1")
    a(f"""
    v_lshlrev_b32 v0, 4, v6
    v_add_u32 v8, s35, v0
    v_mov_b32 v12, 0
    v_mov_b32 v13, 0
    v_mov_b32 v14, 0
    v_mov_b32 v15, 0
    ds_write_b128 v8, v[12:15]
    ds_write_b128 v8, v[12:15] offset:1024
    s_mov_b32 s43, 0
    s_mov_b64 exec, s[42:43]
    ds_write_b128 v8, v[12:15] offset:2048
    s_mov_b64 exec, -1
    """)
    a(f"""
    v_and_b32 v9, 31, v6
    v_lshrrev_b32 v10, 5, v6
    v_and_b32 v11, 3, v9
    v_sub_u32 v11, 3, v11
    v_mul_u32_u24 v11, 1120, v11
    v_lshrrev_b32 v12, 2, v9
    v_lshlrev_b32 v12, 3, v12
    v_sub_u32 v11, v11, v12
    v_lshl_add_u32 v11, v10, 4, v11
    s_add_u32 s45, s35, {HT_SZ + 56}
    v_add_u32 v2, s45, v11
    v_add_u32 v3, 4480, v2
    v_mul_u32_u24 v11, 80, v9
    v_lshl_add_u32 v11, v10, 4, v11
    s_mul_i32 s45, s37, {16*80}
    s_add_u32 s45, s45, s35
    s_add_u32 s45, s45, 80
    v_add_u32 v4, s45, v11
    """)
    a(f"""
    s_lshl_b32 s45, s36, 10
    s_lshl_b32 s46, s37, 4
    s_add_u32 s45, s45, s46
    v_lshlrev_b32 v11, 5, v9
    v_lshl_add_u32 v11, v10, 2, v11
    v_add_u32 v11, s45, v11
    s_lshl_b32 s45, s32, 2
    v_lshlrev_b32 v16, 10, v11
    v_add_u32 v16, s45, v16
    v_lshlrev_b32 v17, 11, v11
    v_add_u32 v17, s45, v17
    s_movk_i32 s46, 8192
    s_movk_i32 s47, 4096
    s_movk_i32 s48, 16384
    s_movk_i32 s49, 20480
    s_lshl_b32 s50, s33, 14
    s_add_u32 s50, s50, {WS_WO}
    """)
    srd(a, 24, 4, 2097152)
    srd(a, 28, 12, 4194304)
    a(f"""
    s_waitcnt lgkmcnt(0)
    s_lshl_b32 s40, s40, 16
    s_lshl_b32 s45, s41, 16
    s_and_b32 s41, s41, 0xffff0000
    s_cmp_eq_u32 s36, 0
    s_cselect_b32 s41, s45, s41
    v_mov_b32 v12, s40
    v_add_f32 v12, s41, v12
    v_cvt_pk_bf16_f32 v12, v12, v12
    v_mov_b32 v13, s35
    s_waitcnt vmcnt(0)
    ds_write_b16 v13, v12 offset:2560
    """)
    stamp(a, opt, 1, 16, 2, 3)
    QR = 20
    def wo_load(step, j, sreg):
        r = WO + 64 * (step % 2) + 4 * j
        return f"buffer_load_dwordx4 v[{r}:{r+3}], v0, s[16:19], {sreg} offen offset:{(j%4)*1024}"
    side = []
    for i in range(8):
        so = "s46" if i >= 4 else "0"
        side.append([f"buffer_load_dword v{QR+i}, v16, s[24:27], {so} offen offset:{(i%4)*1024}"])
    for st in range(2):
        for j in range(16):
            x = []
            if j % 4 == 0:
                x.append(f"s_add_u32 s51, s50, {st*65536 + (j//4)*4096}")
            x.append(wo_load(st, j, "s51"))
            side.append(x)
    def rd(it):
        f = FR + 16 * (it % 2)
        a(f"ds_read2_b64 v[{f}:{f+3}], v3 offset0:{4*it} offset1:{4*it+1}")
        bo = (it // 2) * 80 + (it & 1) * 32
        a(f"ds_read_b128 v[{f+4}:{f+7}], v4 offset:{bo}")
        a(f"ds_read_b128 v[{f+8}:{f+11}], v4 offset:{bo+2560}")
        a(f"ds_read2_b64 v[{f+12}:{f+15}], v2 offset0:{4*it} offset1:{4*it+1}")
    g = f"s_nop {gap}" if gap >= 0 else ""
    rd(0)
    sk = 0
    for it in range(32):
        if it < 31:
            rd(it + 1)
            a("s_waitcnt lgkmcnt(4)")
        else:
            a("s_waitcnt lgkmcnt(0)")
        f = FR + 16 * (it % 2)
        c0 = "0" if it == 0 else vr(CA, 16)
        c1 = "0" if it == 0 else vr(CA + 16, 16)
        mf = [f"v_mfma_f32_32x32x16_bf16 {vr(CA+16,16)}, v[{f}:{f+3}], v[{f+8}:{f+11}], {c1}",
              f"v_mfma_f32_32x32x16_bf16 {vr(CA,16)}, v[{f}:{f+3}], v[{f+4}:{f+7}], {c0}",
              f"v_mfma_f32_32x32x16_bf16 {vr(CA+16,16)}, v[{f+12}:{f+15}], v[{f+4}:{f+7}], {vr(CA+16,16)}"]
        for m in mf:
            a(m)
            if it >= opt.get("side0", 8) and sk < len(side):
                for x in side[sk]:
                    a(x)
                sk += 1
            a(g)
    assert sk == len(side)
    a(f"s_nop 7\ns_nop 3\nv_add_u32 v8, s35, v0")
    for k in range(8):
        a(f"ds_write_b128 v8, v[{CA+4*k}:{CA+4*k+3}] offset:{1024*k}")
    a(f"""
    v_mov_b32 v9, 1
    ds_write_b32 v1, v9
    v_and_b32 v9, 3, v6
    v_lshlrev_b32 v9, 8, v9
    v_add_u32 v9, {FLAGS}, v9
    s_lshl_b32 s45, s33, 11
    s_add_u32 s45, s45, {HREG0}
    v_add_u32 v8, s45, v0
    s_mov_b32 s56, 200000
    XPOLL:
    ds_read_b32 v10, v9
    {safe("XPOLLX")}
    s_waitcnt lgkmcnt(0)
    v_cmp_eq_u32 vcc, 0, v10
    s_cbranch_vccnz XPOLL
    XPOLLX:
    """)
    for hh in range(4):
        for k in range(2):
            r = FR + 8 * hh + 4 * k
            a(f"ds_read_b128 v[{r}:{r+3}], v8 offset:{hh*HREG + 1024*k}")
    for r in range(OA, OA + 32, 2):
        a(f"v_mov_b64 v[{r}:{r+1}], 0")
    a(f"s_mov_b32 s45, 0xffff0000\ns_waitcnt vmcnt(32) lgkmcnt(0)")
    for i in range(8):
        a(f"v_add_f32 v{FR+i}, v{FR+i}, v{FR+8+i}")
        a(f"v_add_f32 v{FR+16+i}, v{FR+16+i}, v{FR+24+i}")
        a(f"v_lshlrev_b32 v{FR+8+i}, 16, v{QR+i}")
        a(f"v_and_b32 v{FR+24+i}, s45, v{QR+i}")
        a(f"v_mul_f32 v{FR+i}, v{FR+i}, v{FR+8+i}")
        a(f"v_mul_f32 v{FR+16+i}, v{FR+16+i}, v{FR+24+i}")
        a(f"v_cvt_pk_bf16_f32 v{QR+i}, v{FR+i}, v{FR+16+i}")
        so = ["0", "s47", "s48", "s49"][i // 2]
        a(f"buffer_store_dword v{QR+i}, v17, s[28:31], {so} offen offset:{1024 + 2048*(i%2)}")
    stamp(a, opt, 2, 16, 2, 3)
    a(f"""
    v_and_b32 v9, 3, v6
    v_mul_u32_u24 v9, {PSLOT}, v9
    v_add_u32 v9, 2048, v9
    v_lshlrev_b32 v10, 2, v6
    v_add_u32 v10, 2048, v10
    v_mov_b32 v11, v0
    v_and_b32 v12, 8, v6
    v_mov_b32 v13, 0x44444444
    v_mov_b32 v14, 0xeeeeeeee
    v_cmp_eq_u32 vcc, 0, v12
    v_bfe_u32 v12, v6, 4, 1
    v_lshrrev_b32 v18, 5, v6
    v_cndmask_b32 v13, v14, v13, vcc
    v_lshlrev_b32 v12, 2, v12
    v_lshl_add_u32 v12, v18, 1, v12
    s_lshl_b32 s45, s32, 3
    v_add_u32 v12, s45, v12
    v_lshlrev_b32 v12, 11, v12
    v_and_b32 v18, 15, v6
    v_lshl_add_u32 v12, v18, 4, v12
    s_lshl_b32 s45, s33, 8
    v_add_u32 v12, s45, v12
    v_mov_b32 v15, 0
    s_mov_b32 s52, {SENT:#x}
    s_mov_b32 s53, 0
    OPROJ:
    """)
    T = FR
    AF = 28
    for step in range(8):
        o = (step % 4) * PSTEP
        if step == 4:
            for r in (9, 10, 11):
                a(f"v_add_u32 v{r}, {4*PSTEP}, v{r}")
        a(f"""
        POLL{step}:
        ds_read_b32 v18, v9 offset:{o}
        {safe(f"POLLX{step}")}
        s_waitcnt lgkmcnt(0)
        v_cmp_eq_u32 vcc, s52, v18
        s_cbranch_vccnz POLL{step}
        POLLX{step}:
        """)
        for w in range(4):
            a(f"ds_read_b32 v{T+32+w}, v10 offset:{o+w*PSLOT}")
        for w in range(4):
            a(f"ds_read_b128 v[{T+8*w}:{T+8*w+3}], v11 offset:{o+w*PSLOT}")
            a(f"ds_read_b128 v[{T+8*w+4}:{T+8*w+7}], v11 offset:{o+w*PSLOT+1024}")
        a(f"""
        s_waitcnt lgkmcnt(8)
        v_add_f32 v{T+32}, v{T+32}, v{T+33}
        v_add_f32 v{T+34}, v{T+34}, v{T+35}
        v_add_f32 v{T+32}, v{T+32}, v{T+34}
        v_rcp_f32 v{T+33}, v{T+32}
        s_waitcnt lgkmcnt(4)
        """)
        for i in range(8):
            a(f"v_add_f32 v{T+i}, v{T+i}, v{T+8+i}")
        a(f"v_max3_f32 v15, v15, v{T+32}, v{T+33}")
        a("s_waitcnt lgkmcnt(0)")
        for i in range(8):
            a(f"v_add_f32 v{T+16+i}, v{T+16+i}, v{T+24+i}")
        for i in range(8):
            a(f"v_add_f32 v{T+i}, v{T+i}, v{T+16+i}")
        for i in range(8):
            a(f"v_mul_f32 v{T+i}, v{T+i}, v{T+33}")
        for i in range(4):
            a(f"v_cvt_pk_bf16_f32 v{AF+i}, v{T+2*i}, v{T+2*i+1}")
        a(f"s_waitcnt vmcnt({16 if step < 7 else 0})\ns_nop 0")
        for t in range(8):
            b = WO + 64 * (step % 2) + 8 * t
            a(f"v_smfmac_f32_16x16x64_bf16 v[{OA+4*t}:{OA+4*t+3}], v[{AF}:{AF+3}], v[{b}:{b+7}], v13")
            if step < 6:
                for j in (2 * t, 2 * t + 1):
                    if j % 4 == 0:
                        a(f"s_add_u32 s51, s50, {(step+2)*65536 + (j//4)*4096}")
                    a(wo_load(step, j, "s51"))
            if step < 7 and opt.get("ogap", 3) >= 0:
                a(f"s_nop {opt.get('ogap', 3)}")
    a("s_nop 7")
    for t in range(8):
        for r in range(2):
            x = OA + 4 * t + r
            a(f"v_permlane32_swap_b32 v{x}, v{x+2}")
    for t in range(8):
        for r in range(2):
            x = OA + 4 * t + r
            a(f"v_add_f32 v{x}, v{x}, v{x+2}")
    for r in range(2):
        for d in range(4):
            a(f"v_cvt_pk_bf16_f32 v{T+4*r+d}, v{OA+8*d+r}, v{OA+8*d+4+r}")
        a(f"buffer_store_dwordx4 v[{T+4*r}:{T+4*r+3}], v12, s[28:31], 0 offen offset:{2048*r}")
    stamp(a, opt, 3, 16, 2, 3)
    a("s_cmp_lg_u32 s53, 0\ns_cbranch_scc1 K2_END")
    for t in range(1, 8):
        a(f"v_pk_add_f32 v[{OA}:{OA+1}], v[{OA}:{OA+1}], v[{OA+4*t}:{OA+4*t+1}]")
    force = opt.get("force_fb")
    a(f"""
    v_add_f32 v{OA}, v{OA}, v{OA+1}
    v_mov_b32 v18, {f32bits(2.0**30):#x}
    v_movk_dummy
    v_cmp_class_f32 vcc, v{OA}, v19
    v_cmp_nle_f32 s[54:55], v15, v18
    s_or_b64 vcc, vcc, s[54:55]
    """.replace("v_movk_dummy", "v_mov_b32 v19, 0x207"))
    if force:
        a("s_mov_b64 vcc, -1")
    a(f"""
    s_cbranch_vccz K2_HOK
    v_mov_b32 v18, {FLAGS+1024}
    v_mov_b32 v19, 1
    ds_write_b32 v18, v19
    K2_HOK:
    s_waitcnt lgkmcnt(0)
    s_barrier
    v_mov_b32 v18, {FLAGS+1024}
    ds_read_b32 v19, v18
    s_waitcnt lgkmcnt(0)
    v_readfirstlane_b32 s54, v19
    s_cmp_eq_u32 s54, 0
    s_cbranch_scc1 K2_END
    s_setprio 0
    s_waitcnt vmcnt(0)
    """)
    for st in range(2):
        for j in range(16):
            if j % 4 == 0:
                a(f"s_add_u32 s51, s50, {st*65536 + (j//4)*4096}")
            a(wo_load(st, j, "s51"))
    for r in range(OA, OA + 32, 2):
        a(f"v_mov_b64 v[{r}:{r+1}], 0")
    for r in (9, 10, 11):
        a(f"v_subrev_u32 v{r}, {4*PSTEP}, v{r}")
    for k in range(9):
        a("s_barrier")
    a("s_mov_b32 s53, 1\ns_branch OPROJ")

HEADER = open("cdna_kernels/" + NAME + ".s.ref").read().split("; Override launch")[0]

def gen(opt):
    opt = dict(opt)
    opt.setdefault("wsrec", WS_END)
    if opt.get("time"):
        opt["wsrec"] = 0x600000
    o1 = dict(opt); o1["tv"] = (128, 129); o1["tbase"] = WS_TIME
    o2 = dict(opt); o2["tv"] = (18, 19); o2["tbase"] = WS_TIME + 0x20000
    s = HEADER
    s += f"; @launch kernel=k1_kernel grid=(256,1,1) block=(512,1,1) lds={K1_LDS}\n"
    s += f"; @launch kernel={NAME}_kernel grid=(256,1,1) block=(512,1,1) lds={K2_LDS}\n"
    s += '.amdgcn_target "amdgcn-amd-amdhsa--gfx950"\n.text\n'
    s += gen_k1(o1) + gen_k2(o2)
    s += '.section .rodata,"a"\n' + kdesc("k1_kernel", 136) + kdesc(f"{NAME}_kernel", 256)
    return s

if __name__ == "__main__":
    opt = {}
    out = "cdna_kernels/" + NAME + ".s"
    for x in sys.argv[1:]:
        k, v = x.split("=")
        if k == "out":
            out = v
        else:
            opt[k] = int(v)
    open(out, "w").write(gen(opt))
```

```python
import sys, math, struct

NAME = "concat_heads__grouped_kv_mqa__ssm_conv_h3__prompt"
WS_Q = 0
WS_K = 0x200000
WS_V = 0x210000
WS_WO = 0x220000
WS_U = 0x2A0000
U_STRIDE = 4224
WS_END = 0x4B0000
WS_TIME = 0x700000

K1_LDS = 147456
STG = 36864

def f32bits(x):
    return struct.unpack("<I", struct.pack("<f", x))[0]

class Asm:
    def __init__(self):
        self.l = []
    def __call__(self, s):
        for line in s.strip("\n").split("\n"):
            line = line.strip()
            if not line:
                continue
            if line.endswith(":") or line.startswith("."):
                self.l.append(line)
            else:
                self.l.append("    " + line)
    def text(self):
        return "\n".join(self.l) + "\n"

def vr(a, n):
    return f"v[{a}:{a+n-1}]" if n > 1 else f"v{a}"

def srd(a, reg, lo, size, off=None):
    if off is None:
        a(f"s_mov_b32 s{reg}, s{lo}\ns_mov_b32 s{reg+1}, s{lo+1}")
    else:
        a(f"s_add_u32 s{reg}, s{lo}, {off}\ns_addc_u32 s{reg+1}, s{lo+1}, 0")
    a(f"s_mov_b32 s{reg+2}, {size}\ns_mov_b32 s{reg+3}, 0x20000")

def stamp(a, opt, slot, srdreg, idreg, wreg):
    if not opt.get("time"):
        return
    t0, t1 = opt["tv"]
    a(f"""
    s_memrealtime s[90:91]
    s_lshl_b32 s92, s{idreg}, 3
    s_add_u32 s92, s92, s{wreg}
    s_lshl_b32 s92, s92, 6
    s_add_u32 s92, s92, {opt['tbase'] + slot*4}
    s_waitcnt lgkmcnt(0)
    v_mov_b32 v{t0}, s90
    v_mov_b32 v{t1}, s92
    buffer_store_dword v{t0}, v{t1}, s[{srdreg}:{srdreg+3}], 0 offen
    """)

def gen_k1(opt):
    a = Asm()
    scm = {0: "", 1: " sc1", 2: " sc0 sc1", 3: " nt"}
    SC = scm[opt.get("sc", 0)]
    SCP = scm[opt.get("scp", 0)]
    NTP = " nt" if opt.get("ntp") else ""
    tm = opt.get("time")
    a(f"""
.globl k1_kernel
.p2align 8
.type k1_kernel,@function
k1_kernel:
    s_cmp_ge_u32 s2, 256
    s_cbranch_scc1 K1_END
    s_load_dwordx16 s[4:19], s[0:1], 0
    s_load_dwordx2 s[20:21], s[0:1], 64
    s_load_dwordx2 s[22:23], s[0:1], 104
    v_lshrrev_b32 v1, 6, v0
    v_and_b32 v2, 63, v0
    v_readfirstlane_b32 s3, v1
    s_and_b32 s24, s2, 7
    s_lshr_b32 s25, s2, 3
    s_and_b32 s26, s25, 3
    s_lshl_b32 s27, s24, 2
    s_add_u32 s26, s26, s27
    s_lshr_b32 s27, s25, 2
    s_cmp_ge_u32 s3, 4
    s_cbranch_scc1 K1_LD
    """)
    if opt.get("pm", 0) == 0:
        a(f"""
        v_and_b32 v3, 7, v2
        v_and_b32 v4, 56, v2
        s_lshl_b32 s29, s24, 7
        s_lshl_b32 s30, s3, 5
        s_add_u32 s29, s29, s30
        v_lshlrev_b32 v5, 2, v3
        v_add_u32 v5, s29, v5
        """)
    else:
        a(f"""
        v_and_b32 v3, 31, v2
        v_lshrrev_b32 v4, 5, v2
        s_lshl_b32 s29, s24, 7
        s_lshl_b32 s30, s3, 4
        v_lshlrev_b32 v4, 3, v4
        v_add_u32 v4, s30, v4
        v_lshlrev_b32 v5, 2, v3
        v_add_u32 v5, s29, v5
        """)
    a(f"""
    s_lshl_b32 s30, s25, 16
    v_lshlrev_b32 v6, 10, v4
    v_add3_u32 v8, v5, v6, s30
    v_subrev_u32 v9, 3072, v8
    v_lshlrev_b32 v10, 2, v5
    s_movk_i32 s31, 4096
    s_waitcnt lgkmcnt(0)
    """)
    srd(a, 32, 16, 2097152)
    srd(a, 36, 18, 2097152)
    srd(a, 40, 20, 4096)
    KR = 16
    VRAW = 28
    a("buffer_load_dwordx4 v[12:15], v10, s[40:43], 0 offen")
    for i in range(3):
        a(f"buffer_load_dword v{KR+i}, v9, s[32:35], 0 offen offset:{i*1024}{NTP}")
    for i in range(8):
        so = "s31" if i >= 4 else "0"
        a(f"buffer_load_dword v{KR+3+i}, v8, s[32:35], {so} offen offset:{(i%4)*1024}{NTP}")
    for i in range(8):
        so = "s31" if i >= 4 else "0"
        a(f"buffer_load_dword v{VRAW+i}, v8, s[36:39], {so} offen offset:{(i%4)*1024}{NTP}")
    if opt.get("b0", 0):
        a("s_barrier")
    srd(a, 44, 22, opt["wsrec"])
    stamp(a, opt, 0, 44, 2, 3)
    a(f"""
    v_mul_u32_u24 v7, {U_STRIDE//2}, v5
    s_lshl_b32 s30, s25, 7
    s_sub_u32 s30, {WS_U + 4080}, s30
    v_lshlrev_b32 v6, 1, v4
    v_sub_u32 v7, v7, v6
    v_add_u32 v7, s30, v7
    v_add_u32 v10, {U_STRIDE}, v7
    """)
    RA = 112; RB = 114; RS = 130
    a(f"""
    s_and_b32 s28, s3, 1
    s_lshr_b32 s29, s3, 1
    v_lshrrev_b32 v3, 5, v2
    v_bfe_u32 v4, v2, 2, 2
    v_lshl_add_u32 v5, v3, 6, v4
    v_lshlrev_b32 v5, 7, v5
    v_lshrrev_b32 v6, 1, v4
    v_xor_b32 v6, s28, v6
    v_lshl_add_u32 v5, v6, 6, v5
    v_bfe_u32 v6, v2, 4, 1
    v_lshl_add_u32 v5, v6, 5, v5
    v_and_b32 v6, 3, v2
    v_lshl_add_u32 v{RA}, v6, 3, v5
    v_add_u32 v{RA+1}, {2*STG}, v{RA}
    v_and_b32 v4, 31, v2
    s_lshl_b32 s28, s29, 13
    v_lshlrev_b32 v5, 8, v4
    v_add_u32 v5, s28, v5
    v_and_b32 v4, 15, v2
    v_lshlrev_b32 v6, 3, v3
    v_xor_b32 v4, v4, v6
    """)
    for ks in range(8):
        a(f"v_xor_b32 v6, {ks}, v4\nv_lshl_add_u32 v{RB+ks}, v6, 4, v5\nv_add_u32 v{RB+8+ks}, {2*STG}, v{RB+ks}")
    a(f"""
    s_lshl_b32 s28, s26, 3
    s_lshl_b32 s52, s29, 2
    s_add_u32 s28, s28, s52
    s_lshl_b32 s28, s28, 13
    s_lshl_b32 s52, s27, 10
    s_add_u32 s28, s28, s52
    s_and_b32 s52, s3, 1
    s_lshl_b32 s52, s52, 8
    s_add_u32 s28, s28, s52
    v_bfe_u32 v4, v2, 3, 2
    v_lshlrev_b32 v4, 13, v4
    v_lshl_add_u32 v4, v3, 9, v4
    v_and_b32 v6, 7, v2
    v_lshl_add_u32 v4, v6, 4, v4
    v_add_u32 v{RS}, s28, v4
    s_mov_b32 s29, 0xffff0000
    """)
    WP = 40
    KP = 48
    VP = 72
    U = 88
    OUT = 104
    tw = 1 if tm else 0
    a(f"s_waitcnt vmcnt({8+tw})")
    a(f"""
    v_lshlrev_b32 v{WP+0}, 16, v12
    v_lshlrev_b32 v{WP+1}, 16, v14
    v_and_b32 v{WP+2}, s29, v12
    v_and_b32 v{WP+3}, s29, v14
    v_lshlrev_b32 v{WP+4}, 16, v13
    v_lshlrev_b32 v{WP+5}, 16, v15
    v_and_b32 v{WP+6}, s29, v13
    v_and_b32 v{WP+7}, s29, v15
    """)
    for i in range(11):
        a(f"v_lshlrev_b32 v{KP+2*i}, 16, v{KR+i}\nv_and_b32 v{KP+2*i+1}, s29, v{KR+i}")
    for j in range(4):
        for t in range(8):
            k = KP + 2 * (t + 3 - j)
            w = WP + 2 * j
            u = U + 2 * t
            if j == 0:
                a(f"v_pk_mul_f32 v[{u}:{u+1}], v[{k}:{k+1}], v[{w}:{w+1}]")
            else:
                a(f"v_pk_fma_f32 v[{u}:{u+1}], v[{k}:{k+1}], v[{w}:{w+1}], v[{u}:{u+1}]")
    a(f"s_waitcnt vmcnt({tw})")
    if tm:
        a("s_memrealtime s[94:95]")
    for i in range(8):
        a(f"v_lshlrev_b32 v{VP+2*i}, 16, v{VRAW+i}\nv_and_b32 v{VP+2*i+1}, s29, v{VRAW+i}")
    for t in range(8):
        u = U + 2 * t
        a(f"v_pk_mul_f32 v[{u}:{u+1}], v[{u}:{u+1}], v[{VP+2*t}:{VP+2*t+1}]")
    for c in range(2):
        for d in range(4):
            a(f"v_cvt_pk_bf16_f32 v{OUT+4*c+d}, v{U+2*(7-2*d)+c}, v{U+2*(6-2*d)+c}")
    def ustores():
        a(f"buffer_store_dwordx4 v[{OUT}:{OUT+3}], v7, s[44:47], 0 offen{SCP}")
        a(f"buffer_store_dwordx4 v[{OUT+4}:{OUT+7}], v10, s[44:47], 0 offen{SCP}")
        a(f"""
        s_cmp_lg_u32 s25, 0
        s_cbranch_scc1 K1_NOPAD
        v_mov_b32 v12, 0
        v_mov_b32 v13, 0
        v_mov_b32 v14, 0
        v_mov_b32 v15, 0
        buffer_store_dwordx4 v[12:15], v7, s[44:47], 0 offen offset:128{SCP}
        buffer_store_dwordx4 v[12:15], v10, s[44:47], 0 offen offset:128{SCP}
        K1_NOPAD:
        """)
    ust = opt.get("ust", 0)
    ACC = 16
    FR = 32
    for c in range(4):
        if c == ust:
            ustores()
        if tm:
            a(f"s_memrealtime s[{72+4*c}:{73+4*c}]")
        a("s_barrier")
        if tm:
            a(f"s_memrealtime s[{74+4*c}:{75+4*c}]\ns_waitcnt lgkmcnt(0)")
        va = RA + (c >> 1)
        vb = RB + 8 * (c >> 1)
        so = (c & 1) * STG
        def rd(ks):
            f = FR + 8 * ks
            a(f"ds_read_b64_tr_b16 v[{f}:{f+1}], v{va} offset:{so+16384+ks*1024}")
            a(f"ds_read_b64_tr_b16 v[{f+2}:{f+3}], v{va} offset:{so+16384+ks*1024+512}")
            a(f"ds_read_b128 v[{f+4}:{f+7}], v{vb+ks} offset:{so}")
        for ks in range(5):
            rd(ks)
        for ks in range(8):
            issued = min(8, 5 + ks)
            a(f"s_waitcnt lgkmcnt({3*(issued-ks-1)})")
            f = FR + 8 * ks
            cc = "0" if (c == 0 and ks == 0) else vr(ACC, 16)
            a(f"v_mfma_f32_32x32x16_bf16 {vr(ACC,16)}, v[{f}:{f+3}], v[{f+4}:{f+7}], {cc}")
            if 5 + ks < 8:
                rd(5 + ks)
    sc = f32bits(0.25 * math.log2(math.e))
    a(f"s_mov_b32 s28, {sc:#x}\ns_mov_b32 s29, {sc:#x}\ns_nop 7\ns_nop 2")
    for h in range(2):
        for r in range(8 * h, 8 * h + 8, 2):
            a(f"v_pk_mul_f32 v[{ACC+r}:{ACC+r+1}], v[{ACC+r}:{ACC+r+1}], s[28:29]")
        for r in range(4 * h, 4 * h + 4):
            a(f"v_cvt_pk_bf16_f32 v{FR+r}, v{ACC+2*r}, v{ACC+2*r+1}")
        a(f"buffer_store_dwordx4 v[{FR+4*h}:{FR+4*h+3}], v{RS}, s[44:47], 0 offen offset:{128*h}{SC}")
    if ust == 4:
        ustores()
    if tm:
        a("s_memrealtime s[88:89]\ns_waitcnt vmcnt(0)")
    stamp(a, opt, 1, 44, 2, 3)
    if tm:
        t0, t1 = opt["tv"]
        for k in list(range(72, 90, 2)) + [94]:
            a(f"v_mov_b32 v{t0}, s{k}\nv_add_u32 v{t1}, 4, v{t1}\nbuffer_store_dword v{t0}, v{t1}, s[44:47], 0 offen")
    a("s_endpgm")
    a(f"""
    K1_LD:
    s_sub_u32 s33, s3, 4
    v_lshrrev_b32 v3, 4, v2
    v_and_b32 v4, 15, v2
    v_xor_b32 v4, v4, v3
    s_lshl_b32 s28, s26, 6
    s_lshl_b32 s29, s33, 4
    s_add_u32 s28, s28, s29
    s_lshl_b32 s28, s28, 10
    v_lshlrev_b32 v5, 10, v3
    v_add_u32 v5, s28, v5
    """)
    for i in range(4):
        a(f"v_xor_b32 v6, {4*i}, v4\nv_lshl_add_u32 v{8+i}, v6, 4, v5")
        if i:
            a(f"v_add_u32 v{8+i}, {i*3072}, v{8+i}")
    a(f"""
    v_lshrrev_b32 v6, 3, v2
    v_and_b32 v7, 7, v2
    v_and_b32 v3, 1, v3
    v_lshlrev_b32 v3, 2, v3
    v_xor_b32 v7, v7, v3
    s_lshl_b32 s28, s33, 15
    s_lshl_b32 s29, s27, 7
    s_add_u32 s28, s28, s29
    v_lshlrev_b32 v6, 10, v6
    v_lshl_add_u32 v6, v7, 4, v6
    v_add_u32 v12, s28, v6
    v_add_u32 v13, {7168}, v12
    v_add_u32 v14, {2*7168}, v12
    v_add_u32 v15, {3*7168}, v12
    s_lshl_b32 s28, s33, 10
    v_lshlrev_b32 v16, 4, v2
    v_add_u32 v16, s28, v16
    s_lshl_b32 s30, s33, 12
    s_lshl_b32 s31, s33, 10
    v_mov_b32 v17, -1
    """)
    for c in range(1, 4):
        a(f"s_movk_i32 s{60+c}, {256*c}\ns_mov_b32 s{64+c}, {131072*c}\ns_movk_i32 s{68+c}, {4096*c}")
    a("s_waitcnt lgkmcnt(0)")
    srd(a, 32, 4, 2097152)
    srd(a, 36, 6, 524288)
    a("""
    s_cmp_lt_u32 s27, 4
    s_cselect_b32 s40, s8, s10
    s_cselect_b32 s41, s9, s11
    s_mov_b32 s42, 16384
    s_mov_b32 s43, 0x20000
    """)
    if opt.get("b0", 0):
        a("s_barrier")
    def issue(c):
        sx = f"s{60+c}" if c else "0"
        sw = f"s{64+c}" if c else "0"
        sk = f"s{68+c}" if c else "0"
        a(f"s_add_u32 m0, s30, {c*STG}\ns_nop 0")
        for i in range(4):
            a(f"buffer_load_dwordx4 v{8+i}, s[32:35], {sx} offen offset:{i*1024} lds")
        a(f"s_add_u32 m0, s30, {c*STG+16384}\ns_nop 0")
        for i in range(4):
            a(f"buffer_load_dwordx4 v{12+i}, s[36:39], {sw} offen offset:{i*1024} lds")
        a(f"s_add_u32 m0, s31, {c*STG+32768}\ns_nop 0")
        a(f"buffer_load_dwordx4 v16, s[40:43], {sk} offen lds")
    pre = opt.get("pre", 3)
    issue(0)
    srd(a, 44, 22, opt["wsrec"])
    WOR = 20
    a(f"""
    s_cmp_lg_u32 s3, 6
    s_cbranch_scc1 K1_NOWO1
    s_lshr_b32 s48, s2, 5
    s_bfe_u32 s49, s2, 0x20003
    s_bfe_u32 s50, s2, 0x10002
    s_and_b32 s51, s2, 3
    s_lshl_b32 s52, s48, 3
    s_lshl_b32 s53, s50, 2
    s_add_u32 s52, s52, s53
    s_add_u32 s52, s52, s51
    s_lshl_b32 s52, s52, 13
    s_lshl_b32 s53, s49, 8
    s_add_u32 s52, s52, s53
    v_lshlrev_b32 v17, 2, v2
    v_add_u32 v17, s52, v17
    """)
    srd(a, 56, 12, 524288)
    for i in range(8):
        so = "s69" if i >= 4 else "0"
        a(f"buffer_load_dword v{WOR+i}, v17, s[56:59], {so} offen offset:{(i%4)*1024}")
    a(f"""
    s_lshl_b32 s52, s48, 2
    s_add_u32 s52, s52, s49
    s_lshl_b32 s52, s52, 14
    s_lshl_b32 s53, s50, 10
    s_add_u32 s52, s52, s53
    s_lshl_b32 s53, s51, 8
    s_add_u32 s52, s52, s53
    s_add_u32 s52, s52, {WS_WO}
    v_and_b32 v17, 3, v2
    v_lshlrev_b32 v17, 12, v17
    v_lshrrev_b32 v7, 2, v2
    v_lshl_add_u32 v17, v7, 4, v17
    v_add_u32 v17, s52, v17
    K1_NOWO1:
    """)
    for c in range(1, pre):
        issue(c)
    a("s_cmp_eq_u32 s3, 7\ns_cbranch_scc1 K1_KV")
    def stage_sync(c):
        issued = min(4, pre + c)
        a(f"s_waitcnt vmcnt({9*(issued-c-1)})\ns_barrier")
        if pre + c < 4:
            issue(pre + c)
    for c in range(4):
        stage_sync(c)
    a(f"""
    s_cmp_lg_u32 s3, 6
    s_cbranch_scc1 K1_END
    s_mov_b32 s48, 0x05040100
    s_mov_b32 s49, 0x07060302
    """)
    for i in range(4):
        d0 = 4 * (i % 2) + 2 * (i // 2)
        a(f"v_perm_b32 v{32+i}, v{WOR+d0+1}, v{WOR+d0}, s48")
        a(f"v_perm_b32 v{36+i}, v{WOR+d0+1}, v{WOR+d0}, s49")
    a(f"buffer_store_dwordx4 v[32:35], v17, s[44:47], 0 offen{SCP}")
    a(f"buffer_store_dwordx4 v[36:39], v17, s[44:47], 0 offen offset:2048{SCP}")
    a("s_endpgm")
    a("K1_KV:")
    a(f"""
    v_lshrrev_b32 v3, 4, v2
    v_bfe_u32 v4, v2, 2, 2
    v_lshl_add_u32 v5, v3, 3, v4
    v_lshlrev_b32 v5, 5, v5
    v_and_b32 v6, 3, v2
    v_lshl_add_u32 v20, v6, 3, v5
    v_add_u32 v20, 32768, v20
    v_add_u32 v21, {2*STG}, v20
    v_and_b32 v4, 15, v2
    s_and_b32 s28, s27, 3
    s_lshl_b32 s29, s28, 12
    v_lshlrev_b32 v5, 8, v4
    v_add_u32 v5, s29, v5
    v_xor_b32 v6, v4, v3
    """)
    for k in range(4):
        a(f"v_xor_b32 v18, {4*k}, v6\nv_lshl_add_u32 v{24+k}, v18, 4, v5\nv_add_u32 v{28+k}, {2*STG}, v{24+k}")
    a("s_cmp_ge_u32 s27, 4\ns_cbranch_scc1 K1_V")
    for which in "KV":
        if which == "V":
            a("K1_V:")
        if which == "K":
            a(f"""
            s_lshl_b32 s29, s26, 11
            s_lshr_b32 s34, s28, 1
            s_lshl_b32 s34, s34, 10
            s_add_u32 s29, s29, s34
            s_and_b32 s34, s28, 1
            s_lshl_b32 s34, s34, 8
            s_add_u32 s29, s29, s34
            s_add_u32 s29, s29, {WS_K}
            v_and_b32 v18, 1, v3
            v_lshlrev_b32 v18, 9, v18
            v_lshl_add_u32 v18, v4, 4, v18
            v_lshrrev_b32 v19, 1, v3
            v_lshl_add_u32 v18, v19, 3, v18
            v_add_u32 v22, s29, v18
            """.replace("s34", "s54"))
        else:
            a(f"""
            s_lshl_b32 s29, s26, 2
            s_add_u32 s29, s29, s28
            s_lshl_b32 s29, s29, 9
            s_add_u32 s29, s29, {WS_V}
            v_lshrrev_b32 v18, 1, v3
            v_lshlrev_b32 v18, 8, v18
            v_lshl_add_u32 v18, v4, 4, v18
            v_and_b32 v19, 1, v3
            v_lshl_add_u32 v18, v19, 3, v18
            v_add_u32 v22, s29, v18
            """)
        for c in range(4):
            stage_sync(c)
            va = 20 + (c >> 1)
            vb = 24 + 4 * (c >> 1)
            so = (c & 1) * STG
            for k in range(4):
                f = 64 + 8 * k
                a(f"ds_read_b64_tr_b16 v[{f}:{f+1}], v{va} offset:{so+k*1024}")
                a(f"ds_read_b64_tr_b16 v[{f+2}:{f+3}], v{va} offset:{so+k*1024+128}")
                a(f"ds_read_b128 v[{f+4}:{f+7}], v{vb+k} offset:{so}")
            for k in range(4):
                f = 64 + 8 * k
                a(f"s_waitcnt lgkmcnt({9-3*k})")
                cc = "0" if (c == 0 and k == 0) else "v[48:51]"
                if which == "K":
                    a(f"v_mfma_f32_16x16x32_bf16 v[48:51], v[{f}:{f+3}], v[{f+4}:{f+7}], {cc}")
                else:
                    a(f"v_mfma_f32_16x16x32_bf16 v[48:51], v[{f+4}:{f+7}], v[{f}:{f+3}], {cc}")
        a(f"""
        s_nop 7
        v_cvt_pk_bf16_f32 v52, v48, v49
        v_cvt_pk_bf16_f32 v53, v50, v51
        buffer_store_dwordx2 v[52:53], v22, s[44:47], 0 offen{SC}
        """)
        if tm:
            a("s_waitcnt vmcnt(0)")
        stamp(a, opt, 1, 44, 2, 3)
        a("s_endpgm")
    a("K1_END:\ns_endpgm")
    return a.text()

def kdesc(name, vgpr, sgpr=102):
    return f""".p2align 6
.amdhsa_kernel {name}
  .amdhsa_next_free_vgpr {vgpr}
  .amdhsa_next_free_sgpr {sgpr}
  .amdhsa_accum_offset {vgpr}
  .amdhsa_group_segment_fixed_size 0
  .amdhsa_kernarg_size 112
  .amdhsa_user_sgpr_count 2
  .amdhsa_user_sgpr_kernarg_segment_ptr 1
  .amdhsa_system_sgpr_workgroup_id_x 1
.end_amdhsa_kernel
"""

PSLOT = 2304
PSTEP = 4 * PSLOT
HREG0 = 8 * PSTEP
HT_SZ = 7680
UT_SZ = 9216
HREG = HT_SZ + UT_SZ
FLAGS = HREG0 + 4 * HREG
QREG = FLAGS + 5 * 256
K2_LDS = QREG + 8192
SENT = 0xBF800000

S0 = 16; ACC = 48; KB = 64; VB = 128
QA = 8; VVA = 14; VQA = 15
VIDX = 2; VZ = 4
VOFF = 0; VPW = 1; VPL = 3

def att_ops(i, qreg):
    S = S0 + 16 * (i % 2); Sn = S0 + 16 * ((i + 1) % 2)
    E = [f"v_exp_f32 v{S+j}, v{S+j}" for j in range(16)]
    kn = KB + 4 * ((i + 1) % 16); ip = (i - 1) % 16
    qk = f"v_mfma_f32_32x32x16_bf16 v[{Sn}:{Sn+15}], v[{kn}:{kn+3}], v[{qreg}:{qreg+3}], 0"
    pva = f"v_smfmac_f32_32x32x32_bf16 v[{ACC}:{ACC+15}], v[{VB+8*i}:{VB+8*i+3}], v[{S}:{S+7}], v{VIDX}"
    pvb = f"v_smfmac_f32_32x32x32_bf16 v[{ACC}:{ACC+15}], v[{VB+8*ip+4}:{VB+8*ip+7}], v[{Sn+8}:{Sn+15}], v{VIDX}"
    if XP.get("nopv"):
        pva = pvb = "s_nop 2"
    if XP.get("noqk"):
        qk = "s_nop 1"
    if XP.get("noexp"):
        E = ["s_nop 1"] * 16
    return E, qk, pva, pvb
XP = {}

ZERO_ACC = f"v_mfma_f32_32x32x8_bf16 v[{ACC}:{ACC+15}], v[{VZ}:{VZ+1}], v[{VZ}:{VZ+1}], 0"

def part_writes(step):
    o = (step % 4) * PSTEP
    return [f"ds_write_b128 v{VPW}, v[{ACC}:{ACC+3}] offset:{o}",
            f"ds_write_b128 v{VPW}, v[{ACC+4}:{ACC+7}] offset:{o+1024}",
            f"ds_write_b32 v{VPL}, v{ACC+8} offset:{o}"]

def gen_k2(opt):
    a = Asm()
    kname = f"{NAME}_kernel"
    a(f"""
.globl {kname}
.p2align 8
.type {kname},@function
{kname}:
    s_cmp_ge_u32 s2, 256
    s_cbranch_scc1 K2_END
    s_load_dwordx2 s[14:15], s[0:1], 104
    s_load_dwordx2 s[4:5], s[0:1], 40
    s_load_dwordx4 s[8:11], s[0:1], 72
    s_load_dwordx2 s[12:13], s[0:1], 88
    v_lshrrev_b32 v1, 6, v0
    v_and_b32 v6, 63, v0
    v_readfirstlane_b32 s3, v1
    s_and_b32 s32, s2, 7
    s_lshr_b32 s33, s2, 3
    s_lshl_b32 s32, s32, 5
    s_add_u32 s32, s32, s33
    s_cmp_ge_u32 s3, 4
    s_cbranch_scc1 K2_HELP
    """)
    a(f"""
    v_lshlrev_b32 v{VOFF}, 4, v6
    v_lshrrev_b32 v7, 5, v6
    v_and_b32 v8, 15, v6
    v_lshl_add_u32 v8, v7, 4, v8
    v_lshlrev_b32 v{VVA}, 4, v8
    s_lshl_b32 s34, s32, 13
    s_lshl_b32 s35, s3, 14
    s_add_u32 s36, s35, {WS_K}
    s_add_u32 s40, s35, {WS_V}
    s_add_u32 s37, s36, 4096
    s_add_u32 s38, s36, 8192
    s_add_u32 s39, s36, 12288
    s_add_u32 s41, s40, 4096
    s_add_u32 s42, s40, 8192
    s_add_u32 s43, s40, 12288
    s_mov_b32 s44, 0x0000ffff
    s_mov_b32 s45, 0x0000ffff
    s_waitcnt lgkmcnt(0)
    """)
    srd(a, 16, 14, opt["wsrec"])
    stamp(a, opt, 0, 16, 2, 3)
    if opt.get("time"):
        a("s_memtime s[58:59]")
    order = []
    def ld_group(p):
        out = []
        for t in (2 * p, 2 * p + 1):
            r = KB + 4 * t
            out.append(f"buffer_load_dwordx4 v[{r}:{r+3}], v{VOFF}, s[16:19], s{36+t//4} offen offset:{1024*(t%4)}")
            order.append(f"K{t}")
        out.append("s_mov_b64 exec, s[44:45]")
        for t in range(4 * p, 4 * p + 4):
            r = VB + 4 * t
            out.append(f"buffer_load_dwordx4 v[{r}:{r+3}], v{VVA}, s[16:19], s{40+t//8} offen offset:{512*(t%8)}")
            order.append(f"V{t}")
        out.append("s_mov_b64 exec, -1")
        return out
    lead = opt.get("lead", 3)
    lead0 = opt.get("lead0", 1)
    a(f"buffer_load_dwordx4 v[{QA}:{QA+3}], v{VOFF}, s[16:19], s34 offen")
    order.append("Q0")
    for p in range(lead0):
        for x in ld_group(p):
            a(x)
    a(f"""
    v_bfe_u32 v16, v6, 3, 2
    v_and_b32 v17, 7, v6
    v_lshl_add_u32 v17, v16, 4, v17
    v_lshl_add_u32 v17, v7, 3, v17
    s_mul_i32 s46, s3, {PSLOT}
    v_lshlrev_b32 v{VPW}, 4, v17
    v_add_u32 v{VPW}, s46, v{VPW}
    v_lshlrev_b32 v{VPL}, 2, v17
    v_add_u32 v{VPL}, s46, v{VPL}
    v_add_u32 v{VPL}, 2048, v{VPL}
    v_add_u32 v{VQA}, {QREG}, v{VOFF}
    v_mov_b32 v{VIDX}, 0xdddddddd
    v_mov_b32 v{VZ}, 0
    v_mov_b32 v{VZ+1}, 0
    s_mov_b32 s46, 0x3f803f80
    s_mov_b32 s47, 0x3f803f80
    s_not_b64 exec, s[44:45]
    """)
    if opt.get("zrows", 1):
        a(f"""
        v_and_b32 v16, 27, v6
        v_cmp_eq_u32 vcc, 16, v16
        v_mov_b32 v17, s46
        v_cndmask_b32 v16, 0, v17, vcc
        v_cndmask_b32 v17, 0, v17, vcc
        """)
        for r in range(VB, VB + 128, 2):
            a(f"v_mov_b64 v[{r}:{r+1}], v[16:17]")
    else:
        for r in range(VB, VB + 128, 2):
            a(f"v_mov_b64 v[{r}:{r+1}], s[46:47]")
    a("s_mov_b64 exec, -1")
    for p in range(lead0, lead):
        for x in ld_group(p):
            a(x)
    if lead >= 8:
        a("s_barrier")
    done = [0]
    def need(name):
        k = order.index(name) + 1
        if k > done[0]:
            a(f"s_waitcnt vmcnt({len(order) - k})")
            done[0] = k
    need("K0")
    a(f"v_mfma_f32_32x32x16_bf16 v[{S0}:{S0+15}], v[{KB}:{KB+3}], v[{QA}:{QA+3}], 0")
    a(ZERO_ACC)
    a("s_nop 7\ns_nop 2")
    pat = opt.get("pat", 4)
    nextp = lead
    for step in range(8):
        first = step == 0
        if opt.get("time"):
            a(f"s_memtime s[{60+2*step}:{61+2*step}]")
            a(f"s_memrealtime s[{20+2*(step%6)}:{21+2*(step%6)}]" if step in (0, 2, 4, 6) else "")
        for i in range(16):
            E, qk, pva, pvb = att_ops(i, QA)
            E = list(E)
            seq = []
            if pat == 4:
                p1, p2, p3 = 2, 5, 10
            else:
                p1, p2, p3 = 2, 7, 12
            if i == 0 and first:
                seq = E[0:p2] + [("K1",), qk] + E[p2:p3] + [("V0",), pva] + E[p3:]
            elif i == 0:
                W = part_writes(step - 1)
                seq = E[0:2] + [pvb] + E[2:5] + [qk] + E[5:13] + [W[0], E[13], W[1], E[14], W[2], ZERO_ACC, E[15]]
                if step == 4:
                    seq += [f"v_add_u32 v{VPW}, {4*PSTEP}, v{VPW}", f"v_add_u32 v{VPL}, {4*PSTEP}, v{VPL}"]
            elif i == 1 and not first:
                _, _, pva0, _ = att_ops(0, QA)
                seq = E[0:2] + [pva0] + E[2:5] + [pvb] + E[5:8] + [qk] + E[8:12] + [pva] + E[12:]
                seq.append("s_nop 2")
            else:
                wq = []
                if first and i < 15:
                    wq = [(f"K{i+1}",)]
                elif i == 15 and step < 7:
                    wq = ["s_waitcnt lgkmcnt(0)"]
                if i == 15 and step == 7:
                    qkl = []
                else:
                    qkl = wq + [qk]
                if i == 14 and step < 7:
                    qkl = qkl + [E[p2], f"ds_read_b128 v[{QA}:{QA+3}], v{VQA} offset:{1024*(step+1)}"]
                    p2b = p2 + 1
                else:
                    p2b = p2
                wb = [(f"V{2*i-1}",)] if first else []
                wa = [(f"V{2*i}",)] if first else []
                seq = E[0:p1] + wb + [pvb] + E[p1:p2] + qkl + E[p2b:p3] + wa + [pva] + E[p3:]
            if first and i % 2 == 0 and nextp < 8:
                seq += [("LD", nextp)]
                nextp += 1
                if nextp == 8:
                    seq += ["s_barrier"]
            for s in seq:
                if isinstance(s, tuple):
                    if s[0] == "LD":
                        for x in ld_group(s[1]):
                            a(x)
                    else:
                        need(s[0])
                else:
                    a(s)
        if first:
            need("V31")
    _, _, _, pvb = att_ops(0, QA)
    a("s_nop 1")
    a(pvb)
    a("s_nop 7\ns_nop 3")
    for wr in part_writes(7):
        a(wr)
    if opt.get("time"):
        a("s_memtime s[76:77]\ns_memrealtime s[22:23]")
    a("s_waitcnt lgkmcnt(0)\ns_barrier")
    stamp(a, opt, 1, 16, 2, 3)
    if opt.get("time"):
        for k in range(9):
            a(f"v_mov_b32 v18, s{60+2*k}\nv_add_u32 v19, 4, v19\nbuffer_store_dword v18, v19, s[16:19], 0 offen")
        a(f"v_mov_b32 v18, s58\nv_add_u32 v19, 4, v19\nbuffer_store_dword v18, v19, s[16:19], 0 offen")
        for k in (24, 28, 20, 22):
            a(f"v_mov_b32 v18, s{k}\nv_add_u32 v19, 4, v19\nbuffer_store_dword v18, v19, s[16:19], 0 offen")
    a("s_barrier")
    a(f"""
    v_mov_b32 v7, {FLAGS+1024}
    ds_read_b32 v8, v7
    s_waitcnt lgkmcnt(0)
    v_readfirstlane_b32 s48, v8
    s_cmp_eq_u32 s48, 0
    s_cbranch_scc1 K2_END
    """)
    a(f"""
    s_lshl_b32 s34, s32, 13
    v_subrev_u32 v{VPW}, {4*PSTEP}, v{VPW}
    v_subrev_u32 v{VPL}, {4*PSTEP}, v{VPL}
    s_lshl_b32 s49, s3, 8
    v_lshlrev_b32 v7, 2, v6
    v_add_u32 v7, s49, v7
    v_add_u32 v7, {HREG0}, v7
    v_and_b32 v12, 31, v6
    v_lshlrev_b32 v12, 2, v12
    v_add_u32 v12, {HREG0}, v12
    s_mov_b32 s50, 0
    FB_STEP:
    buffer_load_dwordx4 v[{QA}:{QA+3}], v{VOFF}, s[16:19], s34 offen
    v_mov_b32 v13, 0xff800000
    s_waitcnt vmcnt(0)
    """)
    for i in range(16):
        a(f"v_mfma_f32_32x32x16_bf16 v[{S0}:{S0+15}], v[{KB+4*i}:{KB+4*i+3}], v[{QA}:{QA+3}], 0")
        a("s_nop 7\ns_nop 3")
        for j in range(8):
            a(f"v_max3_f32 v13, v{S0+2*j}, v{S0+2*j+1}, v13")
    a(f"""
    ds_write_b32 v7, v13
    s_waitcnt lgkmcnt(0)
    s_barrier
    """)
    for j in range(8):
        a(f"ds_read_b32 v{S0+j}, v12 offset:{128*j}")
    a("s_waitcnt lgkmcnt(0)")
    for j in range(4):
        a(f"v_max3_f32 v13, v{S0+2*j}, v{S0+2*j+1}, v13")
    for j in range(16):
        a(f"v_sub_f32 v{S0+16+j}, 0, v13")
    a("s_nop 1")
    a(ZERO_ACC)
    for i in range(16):
        a(f"v_mfma_f32_32x32x16_bf16 v[{S0}:{S0+15}], v[{KB+4*i}:{KB+4*i+3}], v[{QA}:{QA+3}], v[{S0+16}:{S0+31}]")
        a("s_nop 7\ns_nop 3")
        for j in range(16):
            a(f"v_exp_f32 v{S0+j}, v{S0+j}")
        a("s_nop 1")
        a(f"v_smfmac_f32_32x32x32_bf16 v[{ACC}:{ACC+15}], v[{VB+8*i}:{VB+8*i+3}], v[{S0}:{S0+7}], v{VIDX}")
        a(f"v_smfmac_f32_32x32x32_bf16 v[{ACC}:{ACC+15}], v[{VB+8*i+4}:{VB+8*i+7}], v[{S0+8}:{S0+15}], v{VIDX}")
    a("s_nop 7\ns_nop 3")
    for wr in part_writes(0):
        a(wr)
    a(f"""
    s_add_u32 s34, s34, 1024
    v_add_u32 v{VPW}, {PSTEP}, v{VPW}
    v_add_u32 v{VPL}, {PSTEP}, v{VPL}
    v_add_u32 v7, 1024, v7
    v_add_u32 v12, 1024, v12
    s_add_u32 s50, s50, 1
    s_cmp_lt_u32 s50, 8
    s_cbranch_scc1 FB_STEP
    s_waitcnt lgkmcnt(0)
    s_barrier
    s_endpgm
    """)
    gen_helper(a, opt)
    a("K2_END:\ns_endpgm")
    return a.text()

def gen_helper(a, opt):
    WO = 128
    OA = 96
    CA = 64
    FR = 32
    gap = opt.get("gap", 7)
    SCA = {0: "", 1: " sc1", 2: " sc0 sc1", 3: " nt"}[opt.get("sca", 0)]
    SCB = {0: "", 1: " sc1", 2: " sc0 sc1", 3: " nt"}[opt.get("scb", 0)]
    def safe(lbl):
        if not opt.get("safe"):
            return ""
        return f"s_sub_u32 s56, s56, 1\ns_cmp_lt_i32 s56, 0\ns_cbranch_scc1 {lbl}"
    a(f"""
    K2_HELP:
    s_setprio {opt.get('hprio', 2)}
    s_sub_u32 s33, s3, 4
    v_lshlrev_b32 v0, 4, v6
    s_lshl_b32 s34, s32, 13
    s_lshl_b32 s35, s33, 11
    s_add_u32 s34, s34, s35
    s_add_u32 m0, s35, {QREG}
    s_waitcnt lgkmcnt(0)
    """)
    srd(a, 16, 14, opt["wsrec"])
    a(f"""
    buffer_load_dwordx4 v0, s[16:19], s34 offen lds
    buffer_load_dwordx4 v0, s[16:19], s34 offen offset:1024 lds
    v_lshlrev_b32 v7, 2, v6
    s_mul_i32 s34, s33, {2*PSTEP}
    v_add_u32 v8, s34, v7
    v_mov_b32 v9, {SENT:#x}
    v_mov_b32 v10, 0
    """)
    for k in range(8):
        a(f"ds_write_b32 v8, v9 offset:{k*PSLOT+2048}")
    a(f"""
    s_lshl_b32 s34, s33, 8
    s_add_u32 s34, s34, {FLAGS}
    v_add_u32 v1, s34, v7
    v_add_u32 v8, {FLAGS+1024}, v7
    ds_write_b32 v1, v10
    ds_write_b32 v8, v10
    s_mul_i32 s35, s33, {HREG}
    s_add_u32 s35, s35, {HREG0}
    s_lshr_b32 s36, s33, 1
    s_and_b32 s37, s33, 1
    s_lshl_b32 s38, s32, 1
    s_add_u32 s38, s38, s36
    """)
    a("s_lshl_b32 s39, s38, 12")
    srd(a, 20, 8, 4096, off="s39")
    stamp(a, opt, 0, 16, 2, 3)
    DA = 32
    a(f"""
    s_load_dword s40, s[20:21], 0
    s_lshl_b32 s39, s32, 2
    s_load_dword s41, s[10:11], s39
    v_mul_u32_u24 v8, 13108, v6
    v_lshrrev_b32 v8, 16, v8
    v_mul_u32_u24 v9, 5, v8
    v_sub_u32 v9, v6, v9
    v_lshlrev_b32 v8, 6, v8
    v_lshl_add_u32 v{DA+9}, v9, 4, v8
    """)
    a(f"""
    s_mul_i32 s57, s38, {U_STRIDE}
    s_lshl_b32 s45, s37, 10
    s_add_u32 s57, s57, s45
    s_add_u32 s57, s57, {WS_U}
    """)
    for k in range(9):
        a(f"""
        v_add_u32 v9, {64*k}, v6
        v_mul_u32_u24 v10, 937, v9
        v_lshrrev_b32 v10, 16, v10
        v_mul_u32_u24 v11, 70, v10
        v_sub_u32 v9, v9, v11
        v_lshlrev_b32 v9, 4, v9
        v_and_b32 v11, 3, v10
        v_lshl_add_u32 v9, v11, 1, v9
        v_lshrrev_b32 v10, 2, v10
        v_lshl_add_u32 v{DA+k}, v10, 11, v9
        """)
    a(f"""
    v_add_u32 v8, s35, v0
    v_mov_b32 v12, 0
    v_mov_b32 v13, 0
    v_mov_b32 v14, 0
    v_mov_b32 v15, 0
    ds_write_b128 v8, v[12:15]
    ds_write_b128 v8, v[12:15] offset:1024
    s_mov_b32 s42, -1
    s_mov_b32 s43, 0
    s_mov_b64 exec, s[42:43]
    ds_write_b128 v8, v[12:15] offset:2048
    s_mov_b64 exec, -1
    """)
    def conv_dma():
        a("s_mov_b32 s43, 0x0fffffff\ns_mov_b64 exec, s[42:43]")
        for k in range(6):
            if k == 5:
                a("s_mov_b64 exec, 0x7ffff")
            a(f"s_add_u32 m0, s35, {2560 + 960*k}\ns_movk_i32 s44, {768*k}")
            a(f"buffer_load_dwordx4 v{DA+9}, s[20:23], s44 offen lds")
        a("s_mov_b64 exec, -1")
        for k in range(9):
            a(f"s_add_u32 m0, s35, {HT_SZ + 1024*k}")
            if k == 8:
                a("s_mov_b32 s43, 0xffff\ns_mov_b64 exec, s[42:43]")
            else:
                a("s_nop 0")
            a(f"buffer_load_dwordx4 v{DA+k}, s[16:19], s57 offen lds")
        a("s_mov_b64 exec, -1")
    a(f"""
    v_and_b32 v9, 31, v6
    v_lshrrev_b32 v10, 5, v6
    v_and_b32 v11, 3, v9
    v_sub_u32 v11, 3, v11
    v_mul_u32_u24 v11, 1120, v11
    v_lshrrev_b32 v12, 2, v9
    v_lshlrev_b32 v12, 3, v12
    v_sub_u32 v11, v11, v12
    v_lshl_add_u32 v11, v10, 4, v11
    s_add_u32 s45, s35, {HT_SZ + 56}
    v_add_u32 v2, s45, v11
    v_add_u32 v3, 4480, v2
    v_mul_u32_u24 v11, 80, v9
    v_lshl_add_u32 v11, v10, 4, v11
    s_mul_i32 s45, s37, {16*80}
    s_add_u32 s45, s45, s35
    s_add_u32 s45, s45, 80
    v_add_u32 v4, s45, v11
    """)
    a(f"""
    s_lshl_b32 s45, s36, 10
    s_lshl_b32 s46, s37, 4
    s_add_u32 s45, s45, s46
    v_lshlrev_b32 v11, 5, v9
    v_lshl_add_u32 v11, v10, 2, v11
    v_add_u32 v11, s45, v11
    s_lshl_b32 s45, s32, 2
    v_lshlrev_b32 v16, 10, v11
    v_add_u32 v16, s45, v16
    v_lshlrev_b32 v17, 11, v11
    v_add_u32 v17, s45, v17
    s_movk_i32 s46, 8192
    s_movk_i32 s47, 4096
    s_movk_i32 s48, 16384
    s_movk_i32 s49, 20480
    s_lshl_b32 s50, s33, 14
    s_add_u32 s50, s50, {WS_WO}
    """)
    srd(a, 24, 4, 2097152)
    srd(a, 28, 12, 4194304)
    QR = 20
    a(f"""
    v_and_b32 v9, 3, v6
    v_mul_u32_u24 v9, {PSLOT}, v9
    v_add_u32 v9, 2048, v9
    v_lshlrev_b32 v10, 2, v6
    v_add_u32 v10, 2048, v10
    v_mov_b32 v11, v0
    v_and_b32 v12, 8, v6
    v_mov_b32 v13, 0x44444444
    v_mov_b32 v14, 0xeeeeeeee
    v_cmp_eq_u32 vcc, 0, v12
    v_bfe_u32 v12, v6, 4, 1
    v_lshrrev_b32 v18, 5, v6
    v_cndmask_b32 v13, v14, v13, vcc
    v_lshlrev_b32 v12, 2, v12
    v_lshl_add_u32 v12, v18, 1, v12
    s_lshl_b32 s45, s32, 3
    v_add_u32 v12, s45, v12
    v_lshlrev_b32 v12, 11, v12
    v_and_b32 v18, 15, v6
    v_lshl_add_u32 v12, v18, 4, v12
    s_lshl_b32 s45, s33, 8
    v_add_u32 v12, s45, v12
    v_mov_b32 v15, 0
    s_mov_b32 s52, {SENT:#x}
    s_mov_b32 s53, 0
    s_mov_b32 s56, 200000
    """)
    for r in range(OA, OA + 32, 2):
        a(f"v_mov_b64 v[{r}:{r+1}], 0")
    a(f"""
    s_waitcnt lgkmcnt(0)
    s_lshl_b32 s40, s40, 16
    s_lshl_b32 s45, s41, 16
    s_and_b32 s41, s41, 0xffff0000
    s_cmp_eq_u32 s36, 0
    s_cselect_b32 s41, s45, s41
    v_mov_b32 v20, s40
    v_add_f32 v20, s41, v20
    v_cvt_pk_bf16_f32 v20, v20, v20
    v_mov_b32 v21, s35
    s_waitcnt vmcnt(0)
    s_barrier
    """)
    if opt.get("nohelp"):
        a("s_barrier\ns_barrier\ns_endpgm")
    vm = []
    vdone = [0]
    def vneed(tag):
        k = len(vm) - vm[::-1].index(tag)
        if k > vdone[0]:
            a(f"s_waitcnt vmcnt({len(vm) - k})")
            vdone[0] = k
    def hstamp(slot):
        if opt.get("time"):
            stamp(a, opt, slot, 16, 2, 3)
            vm.append("stamp")
    def wo_load(step, j):
        if j % 4 == 0:
            a(f"s_add_u32 s51, s50, {step*65536 + (j//4)*4096}")
        r = WO + 64 * (step % 2) + 4 * j
        a(f"buffer_load_dwordx4 v[{r}:{r+3}], v0, s[16:19], s51 offen offset:{(j%4)*1024}")
        vm.append(f"wo{step}")
    for j in range(16):
        wo_load(0, j)
    conv_dma()
    vm.extend(["conv"] * 15)
    for j in range(16):
        wo_load(1, j)
    def rd(it):
        f = FR + 16 * (it % 2)
        a(f"ds_read2_b64 v[{f}:{f+3}], v3 offset0:{4*it} offset1:{4*it+1}")
        bo = (it // 2) * 80 + (it & 1) * 32
        a(f"ds_read_b128 v[{f+4}:{f+7}], v4 offset:{bo}")
        a(f"ds_read_b128 v[{f+8}:{f+11}], v4 offset:{bo+2560}")
        a(f"ds_read2_b64 v[{f+12}:{f+15}], v2 offset0:{4*it} offset1:{4*it+1}")
    def nops(n):
        while n > 0:
            a(f"s_nop {min(n, 16) - 1}")
            n -= 16
    def conv_chunk(i0, i1):
        if i0 == 0:
            vneed("conv")
            a("ds_write_b16 v21, v20 offset:2560")
            hstamp(1)
        rd(i0)
        for it in range(i0, i1):
            if it < i1 - 1:
                rd(it + 1)
                a("s_waitcnt lgkmcnt(4)")
            else:
                a("s_waitcnt lgkmcnt(0)")
            f = FR + 16 * (it % 2)
            c0 = "0" if it == 0 else vr(CA, 16)
            c1 = "0" if it == 0 else vr(CA + 16, 16)
            mf = [f"v_mfma_f32_32x32x16_bf16 {vr(CA+16,16)}, v[{f}:{f+3}], v[{f+8}:{f+11}], {c1}",
                  f"v_mfma_f32_32x32x16_bf16 {vr(CA,16)}, v[{f}:{f+3}], v[{f+4}:{f+7}], {c0}",
                  f"v_mfma_f32_32x32x16_bf16 {vr(CA+16,16)}, v[{f+12}:{f+15}], v[{f+4}:{f+7}], {vr(CA+16,16)}"]
            for m in mf:
                a(m)
                nops(gap + 1)
    def exchange():
        hstamp(4)
        a(f"s_nop 7\ns_nop 3\nv_add_u32 v5, s35, v0")
        for k in range(8):
            a(f"ds_write_b128 v5, v[{CA+4*k}:{CA+4*k+3}] offset:{1024*k}")
        a(f"""
        v_mov_b32 v7, 1
        ds_write_b32 v1, v7
        v_and_b32 v8, 3, v6
        v_lshlrev_b32 v8, 8, v8
        v_add_u32 v8, {FLAGS}, v8
        s_lshl_b32 s45, s33, 11
        s_add_u32 s45, s45, {HREG0}
        v_add_u32 v14, s45, v0
        XPOLL:
        ds_read_b32 v18, v8
        {safe("XPOLLX")}
        s_waitcnt lgkmcnt(0)
        v_cmp_eq_u32 vcc, 0, v18
        s_cbranch_vccnz XPOLL
        XPOLLX:
        """)
        for hh in range(4):
            for k in range(2):
                r = FR + 8 * hh + 4 * k
                a(f"ds_read_b128 v[{r}:{r+3}], v14 offset:{hh*HREG + 1024*k}")
        a("s_mov_b32 s45, 0xffff0000")
        vneed("q2")
        a("s_waitcnt lgkmcnt(0)")
        for i in range(8):
            a(f"v_add_f32 v{FR+i}, v{FR+i}, v{FR+8+i}")
            a(f"v_add_f32 v{FR+16+i}, v{FR+16+i}, v{FR+24+i}")
            a(f"v_lshlrev_b32 v{FR+8+i}, 16, v{QR+i}")
            a(f"v_and_b32 v{FR+24+i}, s45, v{QR+i}")
            a(f"v_mul_f32 v{FR+i}, v{FR+i}, v{FR+8+i}")
            a(f"v_mul_f32 v{FR+16+i}, v{FR+16+i}, v{FR+24+i}")
            a(f"v_cvt_pk_bf16_f32 v{QR+i}, v{FR+i}, v{FR+16+i}")
            so = ["0", "s47", "s48", "s49"][i // 2]
            if not opt.get("nost"):
                a(f"buffer_store_dword v{QR+i}, v17, s[28:31], {so} offen offset:{1024 + 2048*(i%2)}{SCB}")
                vm.append("st")
        hstamp(2)
    T = FR
    L = [5, 7, 8, 14]
    AF = 28
    def reduce_(o):
        for w in range(4):
            a(f"ds_read_b32 v{L[w]}, v10 offset:{o+w*PSLOT}")
        for w in range(4):
            a(f"ds_read_b128 v[{T+8*w}:{T+8*w+3}], v11 offset:{o+w*PSLOT}")
            a(f"ds_read_b128 v[{T+8*w+4}:{T+8*w+7}], v11 offset:{o+w*PSLOT+1024}")
        a(f"""
        s_waitcnt lgkmcnt(8)
        v_add_f32 v{L[0]}, v{L[0]}, v{L[1]}
        v_add_f32 v{L[2]}, v{L[2]}, v{L[3]}
        v_add_f32 v{L[0]}, v{L[0]}, v{L[2]}
        v_rcp_f32 v{L[1]}, v{L[0]}
        s_waitcnt lgkmcnt(4)
        """)
        for i in range(8):
            a(f"v_add_f32 v{T+i}, v{T+i}, v{T+8+i}")
        a(f"v_max3_f32 v15, v15, v{L[0]}, v{L[1]}")
        a("s_waitcnt lgkmcnt(0)")
        for i in range(8):
            a(f"v_add_f32 v{T+16+i}, v{T+16+i}, v{T+24+i}")
        for i in range(8):
            a(f"v_add_f32 v{T+i}, v{T+i}, v{T+16+i}")
        for i in range(8):
            a(f"v_mul_f32 v{T+i}, v{T+i}, v{L[1]}")
        for i in range(4):
            a(f"v_cvt_pk_bf16_f32 v{AF+i}, v{T+2*i}, v{T+2*i+1}")
    def ostep(step):
        o = (step % 4) * PSTEP
        if step == 4:
            for r in (9, 10, 11):
                a(f"v_add_u32 v{r}, {4*PSTEP}, v{r}")
        if step < 7:
            pn = "\n".join(["s_nop 15"] * opt.get("pn", 4))
            a(f"""
            s_branch POLL{step}
            POLLW{step}:
            {pn}
            POLL{step}:
            ds_read_b32 v18, v9 offset:{o}
            {safe(f"POLLX{step}")}
            s_waitcnt lgkmcnt(0)
            v_cmp_eq_u32 vcc, s52, v18
            s_cbranch_vccnz POLLW{step}
            POLLX{step}:
            """)
        else:
            vneed("wo7")
            a("s_barrier")
        reduce_(o)
        vneed(f"wo{step}")
        a("s_nop 1")
        for t in range(8):
            b = WO + 64 * (step % 2) + 8 * t
            a(f"v_smfmac_f32_16x16x64_bf16 v[{OA+4*t}:{OA+4*t+3}], v[{AF}:{AF+3}], v[{b}:{b+7}], v13")
            if step < 6:
                for j in (2 * t, 2 * t + 1):
                    wo_load(step + 2, j)
            if step < 7 and opt.get("ogap", 3) >= 0:
                a(f"s_nop {opt.get('ogap', 3)}")
        if opt.get("time", 0) > 1:
            hstamp(6 + step)
    cuts = [int(x) for x in str(opt.get("cuts", 66776))]
    assert sum(cuts) == 32
    xat = opt.get("xat", 5)
    assert xat >= len(cuts) - 1
    qat = [int(x) for x in "%08d" % opt.get("qat", 112233)]
    it = 0
    for step in range(8):
        ostep(step)
        if step < len(cuts):
            conv_chunk(it, it + cuts[step])
            it += cuts[step]
        for i in range(8):
            if qat[i] == step:
                so = "s46" if i >= 4 else "0"
                a(f"buffer_load_dword v{QR+i}, v16, s[24:27], {so} offen offset:{(i%4)*1024}")
                vm.append("q2")
        if step == xat:
            exchange()
    a("OFINAL:\ns_nop 7")
    for t in range(8):
        for r in range(2):
            x = OA + 4 * t + r
            a(f"v_permlane32_swap_b32 v{x}, v{x+2}")
    for t in range(8):
        for r in range(2):
            x = OA + 4 * t + r
            a(f"v_add_f32 v{x}, v{x}, v{x+2}")
    for r in range(2):
        for d in range(4):
            a(f"v_cvt_pk_bf16_f32 v{T+4*r+d}, v{OA+8*d+r}, v{OA+8*d+4+r}")
        a(f"buffer_store_dwordx4 v[{T+4*r}:{T+4*r+3}], v12, s[28:31], 0 offen offset:{2048*r}{SCA}")
    stamp(a, opt, 3, 16, 2, 3)
    a("s_cmp_lg_u32 s53, 0\ns_cbranch_scc1 K2_END")
    for t in range(1, 8):
        a(f"v_pk_add_f32 v[{OA}:{OA+1}], v[{OA}:{OA+1}], v[{OA+4*t}:{OA+4*t+1}]")
    force = opt.get("force_fb")
    a(f"""
    v_add_f32 v{OA}, v{OA}, v{OA+1}
    v_mov_b32 v18, {f32bits(2.0**30):#x}
    v_mov_b32 v19, 0x207
    v_cmp_class_f32 vcc, v{OA}, v19
    v_cmp_nle_f32 s[54:55], v15, v18
    s_or_b64 vcc, vcc, s[54:55]
    """)
    if force:
        a("s_mov_b64 vcc, -1")
    a(f"""
    s_cbranch_vccz K2_HOK
    v_mov_b32 v18, {FLAGS+1024}
    v_mov_b32 v19, 1
    ds_write_b32 v18, v19
    K2_HOK:
    s_waitcnt lgkmcnt(0)
    s_barrier
    v_mov_b32 v18, {FLAGS+1024}
    ds_read_b32 v19, v18
    s_waitcnt lgkmcnt(0)
    v_readfirstlane_b32 s54, v19
    s_cmp_eq_u32 s54, 0
    s_cbranch_scc1 K2_END
    s_setprio 0
    s_waitcnt vmcnt(0)
    """)
    for r in range(OA, OA + 32, 2):
        a(f"v_mov_b64 v[{r}:{r+1}], 0")
    for r in (10, 11):
        a(f"v_subrev_u32 v{r}, {4*PSTEP}, v{r}")
    for k in range(9):
        a("s_barrier")
    a("s_mov_b32 s53, 0\nFB_O:")
    for j in range(16):
        wo_load(0, j)
    reduce_(0)
    a("s_waitcnt vmcnt(0)\ns_nop 0")
    for t in range(8):
        b = WO + 8 * t
        a(f"v_smfmac_f32_16x16x64_bf16 v[{OA+4*t}:{OA+4*t+3}], v[{AF}:{AF+3}], v[{b}:{b+7}], v13")
    a(f"""
    v_add_u32 v10, {PSTEP}, v10
    v_add_u32 v11, {PSTEP}, v11
    s_add_u32 s50, s50, 65536
    s_add_u32 s53, s53, 1
    s_cmp_lt_u32 s53, 8
    s_cbranch_scc1 FB_O
    s_branch OFINAL
    """)

HEADER = open("cdna_kernels/" + NAME + ".s.ref").read().split("; Override launch")[0]

def gen(opt):
    opt = dict(opt)
    XP.update(opt)
    opt.setdefault("wsrec", WS_END)
    if opt.get("time"):
        opt["wsrec"] = 0x800000
    o1 = dict(opt); o1["tv"] = (132, 133); o1["tbase"] = WS_TIME
    o2 = dict(opt); o2["tv"] = (18, 19); o2["tbase"] = WS_TIME + 0x20000
    s = HEADER
    s += f"; @launch kernel=k1_kernel grid=(256,1,1) block=(512,1,1) lds={K1_LDS}\n"
    s += f"; @launch kernel={NAME}_kernel grid=(256,1,1) block=(512,1,1) lds={K2_LDS}\n"
    s += '.amdgcn_target "amdgcn-amd-amdhsa--gfx950"\n.text\n'
    s += gen_k1(o1) + gen_k2(o2)
    s += '.section .rodata,"a"\n' + kdesc("k1_kernel", 136) + kdesc(f"{NAME}_kernel", 256)
    return s

if __name__ == "__main__":
    opt = {}
    out = "cdna_kernels/" + NAME + ".s"
    for x in sys.argv[1:]:
        k, v = x.split("=")
        if k == "out":
            out = v
        else:
            opt[k] = int(v)
    open(out, "w").write(gen(opt))
```

```python
import sys, math, struct

NAME = "concat_heads__grouped_kv_mqa__ssm_conv_h3__prompt"
WS_Q = 0
WS_K = 0x200000
WS_V = 0x210000
WS_WO = 0x220000
WS_U = 0x2A0000
U_STRIDE = 4224
WS_Y = 0x4B0000
WS_CNT = 0x6B0000
WS_END = 0x6B1000
WS_DUMMY = 0x1000000
WS_TIME = 0x700000

K1_LDS = 147456
STG = 36864

def f32bits(x):
    return struct.unpack("<I", struct.pack("<f", x))[0]

class Asm:
    def __init__(self):
        self.l = []
    def __call__(self, s):
        for line in s.strip("\n").split("\n"):
            line = line.strip()
            if not line:
                continue
            if line.endswith(":") or line.startswith("."):
                self.l.append(line)
            else:
                self.l.append("    " + line)
    def text(self):
        return "\n".join(self.l) + "\n"

def vr(a, n):
    return f"v[{a}:{a+n-1}]" if n > 1 else f"v{a}"

def srd(a, reg, lo, size, off=None):
    if off is None:
        a(f"s_mov_b32 s{reg}, s{lo}\ns_mov_b32 s{reg+1}, s{lo+1}")
    else:
        a(f"s_add_u32 s{reg}, s{lo}, {off}\ns_addc_u32 s{reg+1}, s{lo+1}, 0")
    a(f"s_mov_b32 s{reg+2}, {size}\ns_mov_b32 s{reg+3}, 0x20000")

def stamp(a, opt, slot, srdreg, idreg, wreg):
    if not opt.get("time"):
        return
    t0, t1 = opt["tv"]
    a(f"""
    s_memrealtime s[90:91]
    s_lshl_b32 s92, s{idreg}, 3
    s_add_u32 s92, s92, s{wreg}
    s_lshl_b32 s92, s92, 6
    s_add_u32 s92, s92, {opt['tbase'] + slot*4}
    s_waitcnt lgkmcnt(0)
    v_mov_b32 v{t0}, s90
    v_mov_b32 v{t1}, s92
    buffer_store_dword v{t0}, v{t1}, s[{srdreg}:{srdreg+3}], 0 offen
    """)

def gen_k1(opt):
    a = Asm()
    scm = {0: "", 1: " sc1", 2: " sc0 sc1", 3: " nt"}
    SC = scm[opt.get("sc", 0)]
    SCP = scm[opt.get("scp", 0)]
    NTP = " nt" if opt.get("ntp") else ""
    tm = opt.get("time")
    a(f"""
.globl k1_kernel
.p2align 8
.type k1_kernel,@function
k1_kernel:
    s_cmp_ge_u32 s2, 256
    s_cbranch_scc1 K1_END
    s_load_dwordx16 s[4:19], s[0:1], 0
    s_load_dwordx2 s[20:21], s[0:1], 64
    s_load_dwordx2 s[22:23], s[0:1], 104
    v_lshrrev_b32 v1, 6, v0
    v_and_b32 v2, 63, v0
    v_readfirstlane_b32 s3, v1
    s_and_b32 s24, s2, 7
    s_lshr_b32 s25, s2, 3
    s_and_b32 s26, s25, 3
    s_lshl_b32 s27, s24, 2
    s_add_u32 s26, s26, s27
    s_lshr_b32 s27, s25, 2
    s_cmp_ge_u32 s3, 4
    s_cbranch_scc1 K1_LD
    """)
    if opt.get("pm", 0) == 0:
        a(f"""
        v_and_b32 v3, 7, v2
        v_and_b32 v4, 56, v2
        s_lshl_b32 s29, s24, 7
        s_lshl_b32 s30, s3, 5
        s_add_u32 s29, s29, s30
        v_lshlrev_b32 v5, 2, v3
        v_add_u32 v5, s29, v5
        """)
    else:
        a(f"""
        v_and_b32 v3, 31, v2
        v_lshrrev_b32 v4, 5, v2
        s_lshl_b32 s29, s24, 7
        s_lshl_b32 s30, s3, 4
        v_lshlrev_b32 v4, 3, v4
        v_add_u32 v4, s30, v4
        v_lshlrev_b32 v5, 2, v3
        v_add_u32 v5, s29, v5
        """)
    a(f"""
    s_lshl_b32 s30, s25, 16
    v_lshlrev_b32 v6, 10, v4
    v_add3_u32 v8, v5, v6, s30
    v_subrev_u32 v9, 3072, v8
    v_lshlrev_b32 v10, 2, v5
    s_movk_i32 s31, 4096
    s_waitcnt lgkmcnt(0)
    """)
    srd(a, 32, 16, 2097152)
    srd(a, 36, 18, 2097152)
    srd(a, 40, 20, 4096)
    KR = 16
    VRAW = 28
    a("buffer_load_dwordx4 v[12:15], v10, s[40:43], 0 offen")
    for i in range(3):
        a(f"buffer_load_dword v{KR+i}, v9, s[32:35], 0 offen offset:{i*1024}{NTP}")
    for i in range(8):
        so = "s31" if i >= 4 else "0"
        a(f"buffer_load_dword v{KR+3+i}, v8, s[32:35], {so} offen offset:{(i%4)*1024}{NTP}")
    for i in range(8):
        so = "s31" if i >= 4 else "0"
        a(f"buffer_load_dword v{VRAW+i}, v8, s[36:39], {so} offen offset:{(i%4)*1024}{NTP}")
    if opt.get("b0", 0):
        a("s_barrier")
    srd(a, 44, 22, opt["wsrec"])
    stamp(a, opt, 0, 44, 2, 3)
    a(f"""
    v_mul_u32_u24 v7, {U_STRIDE//2}, v5
    s_lshl_b32 s30, s25, 7
    s_sub_u32 s30, {WS_U + 4080}, s30
    v_lshlrev_b32 v6, 1, v4
    v_sub_u32 v7, v7, v6
    v_add_u32 v7, s30, v7
    v_add_u32 v10, {U_STRIDE}, v7
    """)
    RA = 112; RB = 114; RS = 130
    a(f"""
    s_and_b32 s28, s3, 1
    s_lshr_b32 s29, s3, 1
    v_lshrrev_b32 v3, 5, v2
    v_bfe_u32 v4, v2, 2, 2
    v_lshl_add_u32 v5, v3, 6, v4
    v_lshlrev_b32 v5, 7, v5
    v_lshrrev_b32 v6, 1, v4
    v_xor_b32 v6, s28, v6
    v_lshl_add_u32 v5, v6, 6, v5
    v_bfe_u32 v6, v2, 4, 1
    v_lshl_add_u32 v5, v6, 5, v5
    v_and_b32 v6, 3, v2
    v_lshl_add_u32 v{RA}, v6, 3, v5
    v_add_u32 v{RA+1}, {2*STG}, v{RA}
    v_and_b32 v4, 31, v2
    s_lshl_b32 s28, s29, 13
    v_lshlrev_b32 v5, 8, v4
    v_add_u32 v5, s28, v5
    v_and_b32 v4, 15, v2
    v_lshlrev_b32 v6, 3, v3
    v_xor_b32 v4, v4, v6
    """)
    for ks in range(8):
        a(f"v_xor_b32 v6, {ks}, v4\nv_lshl_add_u32 v{RB+ks}, v6, 4, v5\nv_add_u32 v{RB+8+ks}, {2*STG}, v{RB+ks}")
    a(f"""
    s_lshl_b32 s28, s26, 3
    s_lshl_b32 s52, s29, 2
    s_add_u32 s28, s28, s52
    s_lshl_b32 s28, s28, 13
    s_lshl_b32 s52, s27, 10
    s_add_u32 s28, s28, s52
    s_and_b32 s52, s3, 1
    s_lshl_b32 s52, s52, 8
    s_add_u32 s28, s28, s52
    v_bfe_u32 v4, v2, 3, 2
    v_lshlrev_b32 v4, 13, v4
    v_lshl_add_u32 v4, v3, 9, v4
    v_and_b32 v6, 7, v2
    v_lshl_add_u32 v4, v6, 4, v4
    v_add_u32 v{RS}, s28, v4
    s_mov_b32 s29, 0xffff0000
    """)
    WP = 40
    KP = 48
    VP = 72
    U = 88
    OUT = 104
    tw = 1 if tm else 0
    a(f"s_waitcnt vmcnt({8+tw})")
    a(f"""
    v_lshlrev_b32 v{WP+0}, 16, v12
    v_lshlrev_b32 v{WP+1}, 16, v14
    v_and_b32 v{WP+2}, s29, v12
    v_and_b32 v{WP+3}, s29, v14
    v_lshlrev_b32 v{WP+4}, 16, v13
    v_lshlrev_b32 v{WP+5}, 16, v15
    v_and_b32 v{WP+6}, s29, v13
    v_and_b32 v{WP+7}, s29, v15
    """)
    for i in range(11):
        a(f"v_lshlrev_b32 v{KP+2*i}, 16, v{KR+i}\nv_and_b32 v{KP+2*i+1}, s29, v{KR+i}")
    for j in range(4):
        for t in range(8):
            k = KP + 2 * (t + 3 - j)
            w = WP + 2 * j
            u = U + 2 * t
            if j == 0:
                a(f"v_pk_mul_f32 v[{u}:{u+1}], v[{k}:{k+1}], v[{w}:{w+1}]")
            else:
                a(f"v_pk_fma_f32 v[{u}:{u+1}], v[{k}:{k+1}], v[{w}:{w+1}], v[{u}:{u+1}]")
    a(f"s_waitcnt vmcnt({tw})")
    if tm:
        a("s_memrealtime s[94:95]")
    for i in range(8):
        a(f"v_lshlrev_b32 v{VP+2*i}, 16, v{VRAW+i}\nv_and_b32 v{VP+2*i+1}, s29, v{VRAW+i}")
    for t in range(8):
        u = U + 2 * t
        a(f"v_pk_mul_f32 v[{u}:{u+1}], v[{u}:{u+1}], v[{VP+2*t}:{VP+2*t+1}]")
    for c in range(2):
        for d in range(4):
            a(f"v_cvt_pk_bf16_f32 v{OUT+4*c+d}, v{U+2*(7-2*d)+c}, v{U+2*(6-2*d)+c}")
    def ustores():
        a(f"buffer_store_dwordx4 v[{OUT}:{OUT+3}], v7, s[44:47], 0 offen{SCP}")
        a(f"buffer_store_dwordx4 v[{OUT+4}:{OUT+7}], v10, s[44:47], 0 offen{SCP}")
        a(f"""
        s_cmp_lg_u32 s25, 0
        s_cbranch_scc1 K1_NOPAD
        v_mov_b32 v12, 0
        v_mov_b32 v13, 0
        v_mov_b32 v14, 0
        v_mov_b32 v15, 0
        buffer_store_dwordx4 v[12:15], v7, s[44:47], 0 offen offset:128{SCP}
        buffer_store_dwordx4 v[12:15], v10, s[44:47], 0 offen offset:128{SCP}
        K1_NOPAD:
        """)
    ust = opt.get("ust", 0)
    ACC = 16
    FR = 32
    for c in range(4):
        if c == ust:
            ustores()
        if tm:
            a(f"s_memrealtime s[{72+4*c}:{73+4*c}]")
        a("s_barrier")
        if tm:
            a(f"s_memrealtime s[{74+4*c}:{75+4*c}]\ns_waitcnt lgkmcnt(0)")
        va = RA + (c >> 1)
        vb = RB + 8 * (c >> 1)
        so = (c & 1) * STG
        def rd(ks):
            f = FR + 8 * ks
            a(f"ds_read_b64_tr_b16 v[{f}:{f+1}], v{va} offset:{so+16384+ks*1024}")
            a(f"ds_read_b64_tr_b16 v[{f+2}:{f+3}], v{va} offset:{so+16384+ks*1024+512}")
            a(f"ds_read_b128 v[{f+4}:{f+7}], v{vb+ks} offset:{so}")
        for ks in range(5):
            rd(ks)
        for ks in range(8):
            issued = min(8, 5 + ks)
            a(f"s_waitcnt lgkmcnt({3*(issued-ks-1)})")
            f = FR + 8 * ks
            cc = "0" if (c == 0 and ks == 0) else vr(ACC, 16)
            a(f"v_mfma_f32_32x32x16_bf16 {vr(ACC,16)}, v[{f}:{f+3}], v[{f+4}:{f+7}], {cc}")
            if 5 + ks < 8:
                rd(5 + ks)
    sc = f32bits(0.25 * math.log2(math.e))
    a(f"s_mov_b32 s28, {sc:#x}\ns_mov_b32 s29, {sc:#x}\ns_nop 7\ns_nop 2")
    for h in range(2):
        for r in range(8 * h, 8 * h + 8, 2):
            a(f"v_pk_mul_f32 v[{ACC+r}:{ACC+r+1}], v[{ACC+r}:{ACC+r+1}], s[28:29]")
        for r in range(4 * h, 4 * h + 4):
            a(f"v_cvt_pk_bf16_f32 v{FR+r}, v{ACC+2*r}, v{ACC+2*r+1}")
        a(f"buffer_store_dwordx4 v[{FR+4*h}:{FR+4*h+3}], v{RS}, s[44:47], 0 offen offset:{128*h}{SC}")
    if ust == 4:
        ustores()
    if tm:
        a("s_memrealtime s[88:89]\ns_waitcnt vmcnt(0)")
    stamp(a, opt, 1, 44, 2, 3)
    if tm:
        t0, t1 = opt["tv"]
        for k in list(range(72, 90, 2)) + [94]:
            a(f"v_mov_b32 v{t0}, s{k}\nv_add_u32 v{t1}, 4, v{t1}\nbuffer_store_dword v{t0}, v{t1}, s[44:47], 0 offen")
    a("s_endpgm")
    a(f"""
    K1_LD:
    s_sub_u32 s33, s3, 4
    v_lshrrev_b32 v3, 4, v2
    v_and_b32 v4, 15, v2
    v_xor_b32 v4, v4, v3
    s_lshl_b32 s28, s26, 6
    s_lshl_b32 s29, s33, 4
    s_add_u32 s28, s28, s29
    s_lshl_b32 s28, s28, 10
    v_lshlrev_b32 v5, 10, v3
    v_add_u32 v5, s28, v5
    """)
    for i in range(4):
        a(f"v_xor_b32 v6, {4*i}, v4\nv_lshl_add_u32 v{8+i}, v6, 4, v5")
        if i:
            a(f"v_add_u32 v{8+i}, {i*3072}, v{8+i}")
    a(f"""
    v_lshrrev_b32 v6, 3, v2
    v_and_b32 v7, 7, v2
    v_and_b32 v3, 1, v3
    v_lshlrev_b32 v3, 2, v3
    v_xor_b32 v7, v7, v3
    s_lshl_b32 s28, s33, 15
    s_lshl_b32 s29, s27, 7
    s_add_u32 s28, s28, s29
    v_lshlrev_b32 v6, 10, v6
    v_lshl_add_u32 v6, v7, 4, v6
    v_add_u32 v12, s28, v6
    v_add_u32 v13, {7168}, v12
    v_add_u32 v14, {2*7168}, v12
    v_add_u32 v15, {3*7168}, v12
    s_lshl_b32 s28, s33, 10
    v_lshlrev_b32 v16, 4, v2
    v_add_u32 v16, s28, v16
    s_lshl_b32 s30, s33, 12
    s_lshl_b32 s31, s33, 10
    v_mov_b32 v17, -1
    """)
    for c in range(1, 4):
        a(f"s_movk_i32 s{60+c}, {256*c}\ns_mov_b32 s{64+c}, {131072*c}\ns_movk_i32 s{68+c}, {4096*c}")
    a("s_waitcnt lgkmcnt(0)")
    srd(a, 32, 4, 2097152)
    srd(a, 36, 6, 524288)
    a("""
    s_cmp_lt_u32 s27, 4
    s_cselect_b32 s40, s8, s10
    s_cselect_b32 s41, s9, s11
    s_mov_b32 s42, 16384
    s_mov_b32 s43, 0x20000
    """)
    if opt.get("b0", 0):
        a("s_barrier")
    def issue(c):
        sx = f"s{60+c}" if c else "0"
        sw = f"s{64+c}" if c else "0"
        sk = f"s{68+c}" if c else "0"
        a(f"s_add_u32 m0, s30, {c*STG}\ns_nop 0")
        for i in range(4):
            a(f"buffer_load_dwordx4 v{8+i}, s[32:35], {sx} offen offset:{i*1024} lds")
        a(f"s_add_u32 m0, s30, {c*STG+16384}\ns_nop 0")
        for i in range(4):
            a(f"buffer_load_dwordx4 v{12+i}, s[36:39], {sw} offen offset:{i*1024} lds")
        a(f"s_add_u32 m0, s31, {c*STG+32768}\ns_nop 0")
        a(f"buffer_load_dwordx4 v16, s[40:43], {sk} offen lds")
    pre = opt.get("pre", 3)
    issue(0)
    srd(a, 44, 22, opt["wsrec"])
    WOR = 20
    a(f"""
    s_cmp_lg_u32 s3, 6
    s_cbranch_scc1 K1_NOWO1
    s_lshr_b32 s48, s2, 5
    s_bfe_u32 s49, s2, 0x20003
    s_bfe_u32 s50, s2, 0x10002
    s_and_b32 s51, s2, 3
    s_lshl_b32 s52, s48, 3
    s_lshl_b32 s53, s50, 2
    s_add_u32 s52, s52, s53
    s_add_u32 s52, s52, s51
    s_lshl_b32 s52, s52, 13
    s_lshl_b32 s53, s49, 8
    s_add_u32 s52, s52, s53
    v_lshlrev_b32 v17, 2, v2
    v_add_u32 v17, s52, v17
    """)
    srd(a, 56, 12, 524288)
    for i in range(8):
        so = "s69" if i >= 4 else "0"
        a(f"buffer_load_dword v{WOR+i}, v17, s[56:59], {so} offen offset:{(i%4)*1024}")
    a(f"""
    s_lshl_b32 s52, s48, 2
    s_add_u32 s52, s52, s49
    s_lshl_b32 s52, s52, 14
    s_lshl_b32 s53, s50, 10
    s_add_u32 s52, s52, s53
    s_lshl_b32 s53, s51, 8
    s_add_u32 s52, s52, s53
    s_add_u32 s52, s52, {WS_WO}
    v_and_b32 v17, 3, v2
    v_lshlrev_b32 v17, 12, v17
    v_lshrrev_b32 v7, 2, v2
    v_lshl_add_u32 v17, v7, 4, v17
    v_add_u32 v17, s52, v17
    K1_NOWO1:
    s_lshl_b32 s52, s2, 3
    s_add_u32 s52, s52, s3
    s_cmp_lg_u32 s52, 5
    s_cbranch_scc1 K1_NOZ
    v_lshlrev_b32 v18, 6, v2
    v_add_u32 v18, {WS_CNT}, v18
    v_mov_b32 v20, 0
    v_mov_b32 v21, 0
    buffer_store_dwordx2 v[20:21], v18, s[44:47], 0 offen
    K1_NOZ:
    """)
    for c in range(1, pre):
        issue(c)
    a("s_cmp_eq_u32 s3, 7\ns_cbranch_scc1 K1_KV")
    def stage_sync(c):
        issued = min(4, pre + c)
        a(f"s_waitcnt vmcnt({9*(issued-c-1)})\ns_barrier")
        if pre + c < 4:
            issue(pre + c)
    for c in range(4):
        stage_sync(c)
    a(f"""
    s_cmp_lg_u32 s3, 6
    s_cbranch_scc1 K1_END
    s_mov_b32 s48, 0x05040100
    s_mov_b32 s49, 0x07060302
    """)
    for i in range(4):
        d0 = 4 * (i % 2) + 2 * (i // 2)
        a(f"v_perm_b32 v{32+i}, v{WOR+d0+1}, v{WOR+d0}, s48")
        a(f"v_perm_b32 v{36+i}, v{WOR+d0+1}, v{WOR+d0}, s49")
    a(f"buffer_store_dwordx4 v[32:35], v17, s[44:47], 0 offen{SCP}")
    a(f"buffer_store_dwordx4 v[36:39], v17, s[44:47], 0 offen offset:2048{SCP}")
    a("s_endpgm")
    a("K1_KV:")
    a(f"""
    v_lshrrev_b32 v3, 4, v2
    v_bfe_u32 v4, v2, 2, 2
    v_lshl_add_u32 v5, v3, 3, v4
    v_lshlrev_b32 v5, 5, v5
    v_and_b32 v6, 3, v2
    v_lshl_add_u32 v20, v6, 3, v5
    v_add_u32 v20, 32768, v20
    v_add_u32 v21, {2*STG}, v20
    v_and_b32 v4, 15, v2
    s_and_b32 s28, s27, 3
    s_lshl_b32 s29, s28, 12
    v_lshlrev_b32 v5, 8, v4
    v_add_u32 v5, s29, v5
    v_xor_b32 v6, v4, v3
    """)
    for k in range(4):
        a(f"v_xor_b32 v18, {4*k}, v6\nv_lshl_add_u32 v{24+k}, v18, 4, v5\nv_add_u32 v{28+k}, {2*STG}, v{24+k}")
    a("s_cmp_ge_u32 s27, 4\ns_cbranch_scc1 K1_V")
    for which in "KV":
        if which == "V":
            a("K1_V:")
        if which == "K":
            a(f"""
            s_lshl_b32 s29, s26, 11
            s_lshr_b32 s34, s28, 1
            s_lshl_b32 s34, s34, 10
            s_add_u32 s29, s29, s34
            s_and_b32 s34, s28, 1
            s_lshl_b32 s34, s34, 8
            s_add_u32 s29, s29, s34
            s_add_u32 s29, s29, {WS_K}
            v_and_b32 v18, 1, v3
            v_lshlrev_b32 v18, 9, v18
            v_lshl_add_u32 v18, v4, 4, v18
            v_lshrrev_b32 v19, 1, v3
            v_lshl_add_u32 v18, v19, 3, v18
            v_add_u32 v22, s29, v18
            """.replace("s34", "s54"))
        else:
            a(f"""
            s_lshl_b32 s29, s26, 2
            s_add_u32 s29, s29, s28
            s_lshl_b32 s29, s29, 9
            s_add_u32 s29, s29, {WS_V}
            v_lshrrev_b32 v18, 1, v3
            v_lshlrev_b32 v18, 8, v18
            v_lshl_add_u32 v18, v4, 4, v18
            v_and_b32 v19, 1, v3
            v_lshl_add_u32 v18, v19, 3, v18
            v_add_u32 v22, s29, v18
            """)
        for c in range(4):
            stage_sync(c)
            va = 20 + (c >> 1)
            vb = 24 + 4 * (c >> 1)
            so = (c & 1) * STG
            for k in range(4):
                f = 64 + 8 * k
                a(f"ds_read_b64_tr_b16 v[{f}:{f+1}], v{va} offset:{so+k*1024}")
                a(f"ds_read_b64_tr_b16 v[{f+2}:{f+3}], v{va} offset:{so+k*1024+128}")
                a(f"ds_read_b128 v[{f+4}:{f+7}], v{vb+k} offset:{so}")
            for k in range(4):
                f = 64 + 8 * k
                a(f"s_waitcnt lgkmcnt({9-3*k})")
                cc = "0" if (c == 0 and k == 0) else "v[48:51]"
                if which == "K":
                    a(f"v_mfma_f32_16x16x32_bf16 v[48:51], v[{f}:{f+3}], v[{f+4}:{f+7}], {cc}")
                else:
                    a(f"v_mfma_f32_16x16x32_bf16 v[48:51], v[{f+4}:{f+7}], v[{f}:{f+3}], {cc}")
        a(f"""
        s_nop 7
        v_cvt_pk_bf16_f32 v52, v48, v49
        v_cvt_pk_bf16_f32 v53, v50, v51
        buffer_store_dwordx2 v[52:53], v22, s[44:47], 0 offen{SC}
        """)
        if tm:
            a("s_waitcnt vmcnt(0)")
        stamp(a, opt, 1, 44, 2, 3)
        a("s_endpgm")
    a("K1_END:\ns_endpgm")
    return a.text()

def kdesc(name, vgpr, sgpr=102):
    return f""".p2align 6
.amdhsa_kernel {name}
  .amdhsa_next_free_vgpr {vgpr}
  .amdhsa_next_free_sgpr {sgpr}
  .amdhsa_accum_offset {vgpr}
  .amdhsa_group_segment_fixed_size 0
  .amdhsa_kernarg_size 112
  .amdhsa_user_sgpr_count 2
  .amdhsa_user_sgpr_kernarg_segment_ptr 1
  .amdhsa_system_sgpr_workgroup_id_x 1
.end_amdhsa_kernel
"""

PDATA = 8192
HREG0 = PDATA + 65536
SENT = 0xBF800000
HT_SZ = 7680
UT_SZ = 9216
HREG = HT_SZ + UT_SZ
FLAGS = HREG0 + 4 * HREG
QREG = FLAGS + 5 * 256
K2_LDS = QREG + 8192

S0 = 16; ACC = 48; KB = 64; VB = 128
QA = 8; VVA = 14; VQA = 15
VIDX = 2; VZ = 4
VOFF = 0; VPW = 1; VPL = 3

def att_ops(i, qreg):
    S = S0 + 16 * (i % 2); Sn = S0 + 16 * ((i + 1) % 2)
    E = [f"v_exp_f32 v{S+j}, v{S+j}" for j in range(16)]
    kn = KB + 4 * ((i + 1) % 16); ip = (i - 1) % 16
    qk = f"v_mfma_f32_32x32x16_bf16 v[{Sn}:{Sn+15}], v[{kn}:{kn+3}], v[{qreg}:{qreg+3}], 0"
    pva = f"v_smfmac_f32_32x32x32_bf16 v[{ACC}:{ACC+15}], v[{VB+8*i}:{VB+8*i+3}], v[{S}:{S+7}], v{VIDX}"
    pvb = f"v_smfmac_f32_32x32x32_bf16 v[{ACC}:{ACC+15}], v[{VB+8*ip+4}:{VB+8*ip+7}], v[{Sn+8}:{Sn+15}], v{VIDX}"
    if XP.get("nopv"):
        pva = pvb = "s_nop 2"
    if XP.get("noqk"):
        qk = "s_nop 1"
    if XP.get("noexp"):
        E = ["s_nop 1"] * 16
    return E, qk, pva, pvb
XP = {}

ZERO_ACC = f"v_mfma_f32_32x32x8_bf16 v[{ACC}:{ACC+15}], v[{VZ}:{VZ+1}], v[{VZ}:{VZ+1}], 0"

def part_writes(step):
    o = step * 8192
    return [f"ds_write_b128 v{VPW}, v[{ACC}:{ACC+3}] offset:{o}",
            f"ds_write_b128 v{VPW}, v[{ACC+4}:{ACC+7}] offset:{o+1024}",
            f"ds_write_b32 v{VPL}, v{ACC+8} offset:{1024*step}"]

def gen_k2(opt):
    a = Asm()
    kname = f"{NAME}_kernel"
    a(f"""
.globl {kname}
.p2align 8
.type {kname},@function
{kname}:
    s_cmp_ge_u32 s2, 256
    s_cbranch_scc1 K2_END
    s_load_dwordx2 s[14:15], s[0:1], 104
    s_load_dwordx2 s[4:5], s[0:1], 40
    s_load_dwordx4 s[8:11], s[0:1], 72
    s_load_dwordx2 s[12:13], s[0:1], 88
    v_lshrrev_b32 v1, 6, v0
    v_and_b32 v6, 63, v0
    v_readfirstlane_b32 s3, v1
    s_and_b32 s32, s2, 7
    s_lshr_b32 s33, s2, 3
    s_lshl_b32 s32, s32, 5
    s_add_u32 s32, s32, s33
    s_cmp_ge_u32 s3, 4
    s_cbranch_scc1 K2_HELP
    """)
    a(f"""
    v_lshlrev_b32 v{VOFF}, 4, v6
    v_lshrrev_b32 v7, 5, v6
    v_and_b32 v8, 15, v6
    v_lshl_add_u32 v8, v7, 4, v8
    v_lshlrev_b32 v{VVA}, 4, v8
    v_add_u32 v{VVA}, {WS_V - WS_K}, v{VVA}
    s_lshl_b32 s34, s32, 13
    s_lshl_b32 s35, s3, 3
    s_mul_i32 s33, s33, {opt.get("rot", 1)}
    s_add_u32 s35, s35, s33
    s_and_b32 s35, s35, 31
    s_lshl_b32 s35, s35, 11
    s_add_u32 s36, s35, {WS_K}
    s_mov_b32 s44, 0x0000ffff
    s_mov_b32 s45, 0x0000ffff
    s_waitcnt lgkmcnt(0)
    """)
    srd(a, 16, 14, opt["wsrec"])
    stamp(a, opt, 0, 16, 2, 3)
    if opt.get("time"):
        a("s_memtime s[58:59]")
    assert WS_K == 0x200000
    order = []
    def ld_group(p):
        out = []
        for t in (2 * p, 2 * p + 1):
            r = KB + 4 * t
            out.append(f"buffer_load_dwordx4 v[{r}:{r+3}], v{VOFF}, s[16:19], s{36+p} offen offset:{1024*(t%2)}")
            order.append(f"K{t}")
        out.append("s_mov_b64 exec, s[44:45]")
        for t in range(4 * p, 4 * p + 4):
            r = VB + 4 * t
            out.append(f"buffer_load_dwordx4 v[{r}:{r+3}], v{VVA}, s[16:19], s{36+p} offen offset:{512*(t%4)}")
            order.append(f"V{t}")
        out.append("s_mov_b64 exec, -1")
        if p < 7:
            out.append(f"s_add_u32 s{37+p}, s{36+p}, 2048")
            out.append(f"s_and_b32 s{37+p}, s{37+p}, 0x20ffff")
        return out
    lead = opt.get("lead", 3)
    lead0 = opt.get("lead0", 1)
    a(f"buffer_load_dwordx4 v[{QA}:{QA+3}], v{VOFF}, s[16:19], s34 offen")
    order.append("Q0")
    for p in range(lead0):
        for x in ld_group(p):
            a(x)
    a(f"""
    v_bfe_u32 v16, v6, 3, 2
    v_and_b32 v17, 7, v6
    v_lshl_add_u32 v17, v16, 4, v17
    v_lshl_add_u32 v17, v7, 3, v17
    s_lshl_b32 s46, s3, 11
    s_add_u32 s46, s46, {PDATA}
    v_lshl_add_u32 v{VPW}, v17, 4, s46
    s_lshl_b32 s46, s3, 8
    v_lshl_add_u32 v{VPL}, v17, 2, s46
    v_add_u32 v{VQA}, {QREG}, v{VOFF}
    v_mov_b32 v{VIDX}, 0xdddddddd
    v_mov_b32 v{VZ}, 0
    v_mov_b32 v{VZ+1}, 0
    s_mov_b32 s46, 0x3f803f80
    s_mov_b32 s47, 0x3f803f80
    s_not_b64 exec, s[44:45]
    """)
    if opt.get("zrows", 1):
        a(f"""
        v_and_b32 v16, 27, v6
        v_cmp_eq_u32 vcc, 16, v16
        v_mov_b32 v17, s46
        v_cndmask_b32 v16, 0, v17, vcc
        v_cndmask_b32 v17, 0, v17, vcc
        """)
        for r in range(VB, VB + 128, 2):
            a(f"v_mov_b64 v[{r}:{r+1}], v[16:17]")
    else:
        for r in range(VB, VB + 128, 2):
            a(f"v_mov_b64 v[{r}:{r+1}], s[46:47]")
    a("s_mov_b64 exec, -1")
    for p in range(lead0, lead):
        for x in ld_group(p):
            a(x)
    if lead >= 8:
        a("s_barrier")
    done = [0]
    def need(name):
        k = order.index(name) + 1
        if k > done[0]:
            a(f"s_waitcnt vmcnt({len(order) - k})")
            done[0] = k
    if opt.get("aprio"):
        a(f"s_setprio {opt['aprio']}")
    need("K0")
    a(f"v_mfma_f32_32x32x16_bf16 v[{S0}:{S0+15}], v[{KB}:{KB+3}], v[{QA}:{QA+3}], 0")
    a(ZERO_ACC)
    a("s_nop 7\ns_nop 2")
    pat = opt.get("pat", 4)
    nextp = lead
    for step in range(8):
        first = step == 0
        if opt.get("time"):
            a(f"s_memtime s[{60+2*step}:{61+2*step}]")
            a(f"s_memrealtime s[{20+2*(step%6)}:{21+2*(step%6)}]" if step in (0, 2, 4, 6) else "")
        for i in range(16):
            E, qk, pva, pvb = att_ops(i, QA)
            E = list(E)
            seq = []
            if pat == 4:
                p1, p2, p3 = 2, 5, 10
            elif pat == 5:
                p1, p2, p3 = 2, 4, 16
            elif pat == 6:
                p1, p2, p3 = 2, 5, 15
            elif pat == 7:
                p1, p2, p3 = 2, 4, 15
            else:
                p1, p2, p3 = 2, 7, 12
            if i == 0 and first:
                seq = E[0:p2] + [("K1",), qk] + E[p2:p3] + [("V0",), pva] + E[p3:]
            elif i == 0 and pat >= 5:
                W = part_writes(step - 1)
                seq = E[0:2] + [pvb] + E[2:p2] + [qk] + E[p2:13] + [W[0], W[1], E[13], W[2], ZERO_ACC, E[14], E[15], pva]
            elif i == 0:
                W = part_writes(step - 1)
                seq = E[0:2] + [pvb] + E[2:5] + [qk] + E[5:13] + [W[0], E[13], W[1], E[14], W[2], ZERO_ACC, E[15]]
            elif i == 1 and not first and pat < 5:
                _, _, pva0, _ = att_ops(0, QA)
                seq = E[0:2] + [pva0] + E[2:5] + [pvb] + E[5:8] + [qk] + E[8:12] + [pva] + E[12:]
                seq.append("s_nop 2")
            else:
                wq = []
                if first and i < 15:
                    wq = [(f"K{i+1}",)]
                elif i == 15 and step < 7:
                    wq = ["s_waitcnt lgkmcnt(0)"]
                if i == 15 and step == 7:
                    qkl = []
                else:
                    qkl = wq + [qk]
                if i == 14 and step < 7:
                    qkl = qkl + [E[p2], f"ds_read_b128 v[{QA}:{QA+3}], v{VQA} offset:{1024*(step+1)}"]
                    p2b = p2 + 1
                else:
                    p2b = p2
                wb = [(f"V{2*i-1}",)] if first else []
                wa = [(f"V{2*i}",)] if first else []
                seq = E[0:p1] + wb + [pvb] + E[p1:p2] + qkl + E[p2b:p3] + wa + [pva] + E[p3:]
            if first and i % 2 == 0 and nextp < 8:
                seq += [("LD", nextp)]
                nextp += 1
                if nextp == 8:
                    seq += ["s_barrier"]
            for s in seq:
                if isinstance(s, tuple):
                    if s[0] == "LD":
                        for x in ld_group(s[1]):
                            a(x)
                    else:
                        need(s[0])
                else:
                    a(s)
        if first:
            need("V31")
    _, _, _, pvb = att_ops(0, QA)
    a("s_nop 1")
    a(pvb)
    a("s_nop 7\ns_nop 3")
    for wr in part_writes(7)[:9]:
        a(wr)
    if opt.get("time"):
        a("s_memtime s[76:77]\ns_memrealtime s[22:23]")
    a("s_waitcnt lgkmcnt(0)\ns_barrier")
    stamp(a, opt, 1, 16, 2, 3)
    if opt.get("time"):
        for k in range(9):
            a(f"v_mov_b32 v18, s{60+2*k}\nv_add_u32 v19, 4, v19\nbuffer_store_dword v18, v19, s[16:19], 0 offen")
        a(f"v_mov_b32 v18, s58\nv_add_u32 v19, 4, v19\nbuffer_store_dword v18, v19, s[16:19], 0 offen")
        for k in (24, 28, 20, 22):
            a(f"v_mov_b32 v18, s{k}\nv_add_u32 v19, 4, v19\nbuffer_store_dword v18, v19, s[16:19], 0 offen")
    a("s_barrier")
    a(f"""
    v_mov_b32 v7, {FLAGS+1024}
    ds_read_b32 v8, v7
    s_waitcnt lgkmcnt(0)
    v_readfirstlane_b32 s48, v8
    s_cmp_eq_u32 s48, 0
    s_cbranch_scc1 K2_END
    """)
    a(f"""
    s_lshl_b32 s34, s32, 13
    s_lshl_b32 s49, s3, 8
    v_lshlrev_b32 v7, 2, v6
    v_add_u32 v7, s49, v7
    v_add_u32 v7, {HREG0}, v7
    v_and_b32 v12, 31, v6
    v_lshlrev_b32 v12, 2, v12
    v_add_u32 v12, {HREG0}, v12
    s_mov_b32 s50, 0
    FB_STEP:
    buffer_load_dwordx4 v[{QA}:{QA+3}], v{VOFF}, s[16:19], s34 offen
    v_mov_b32 v13, 0xff800000
    s_waitcnt vmcnt(0)
    """)
    for i in range(16):
        a(f"v_mfma_f32_32x32x16_bf16 v[{S0}:{S0+15}], v[{KB+4*i}:{KB+4*i+3}], v[{QA}:{QA+3}], 0")
        a("s_nop 7\ns_nop 3")
        for j in range(8):
            a(f"v_max3_f32 v13, v{S0+2*j}, v{S0+2*j+1}, v13")
    a(f"""
    ds_write_b32 v7, v13
    s_waitcnt lgkmcnt(0)
    s_barrier
    """)
    for j in range(8):
        a(f"ds_read_b32 v{S0+j}, v12 offset:{128*j}")
    a("s_waitcnt lgkmcnt(0)")
    for j in range(4):
        a(f"v_max3_f32 v13, v{S0+2*j}, v{S0+2*j+1}, v13")
    for j in range(16):
        a(f"v_sub_f32 v{S0+16+j}, 0, v13")
    a("s_nop 1")
    a(ZERO_ACC)
    for i in range(16):
        a(f"v_mfma_f32_32x32x16_bf16 v[{S0}:{S0+15}], v[{KB+4*i}:{KB+4*i+3}], v[{QA}:{QA+3}], v[{S0+16}:{S0+31}]")
        a("s_nop 7\ns_nop 3")
        for j in range(16):
            a(f"v_exp_f32 v{S0+j}, v{S0+j}")
        a("s_nop 1")
        a(f"v_smfmac_f32_32x32x32_bf16 v[{ACC}:{ACC+15}], v[{VB+8*i}:{VB+8*i+3}], v[{S0}:{S0+7}], v{VIDX}")
        a(f"v_smfmac_f32_32x32x32_bf16 v[{ACC}:{ACC+15}], v[{VB+8*i+4}:{VB+8*i+7}], v[{S0+8}:{S0+15}], v{VIDX}")
    a("s_nop 7\ns_nop 3")
    for wr in part_writes(0)[:9]:
        a(wr)
    a(f"""
    s_add_u32 s34, s34, 1024
    v_add_u32 v{VPW}, 8192, v{VPW}
    v_add_u32 v{VPL}, 1024, v{VPL}
    v_add_u32 v7, 1024, v7
    v_add_u32 v12, 1024, v12
    s_add_u32 s50, s50, 1
    s_cmp_lt_u32 s50, 8
    s_cbranch_scc1 FB_STEP
    s_waitcnt lgkmcnt(0)
    s_barrier
    s_endpgm
    """)
    gen_helper(a, opt)
    a("K2_END:\ns_endpgm")
    return a.text()

def gen_helper(a, opt):
    WO = 128
    OA = 96
    CA = 64
    FR = 32
    gap = opt.get("gap", 7)
    scm = {0: "", 1: " sc1", 2: " sc0 sc1", 3: " nt"}
    SCA = scm[opt.get("sca", 0)]
    SCB = scm[opt.get("scb", 0)]
    def safe(lbl):
        if not opt.get("safe"):
            return ""
        return f"s_sub_u32 s56, s56, 1\ns_cmp_lt_i32 s56, 0\ns_cbranch_scc1 {lbl}"
    a(f"""
    K2_HELP:
    s_setprio {opt.get('hprio', 2)}
    s_mov_b32 s59, s33
    s_sub_u32 s33, s3, 4
    v_lshlrev_b32 v0, 4, v6
    s_lshl_b32 s34, s32, 13
    s_lshl_b32 s35, s33, 11
    s_add_u32 s34, s34, s35
    s_add_u32 m0, s35, {QREG}
    s_waitcnt lgkmcnt(0)
    """)
    srd(a, 16, 14, opt["wsrec"])
    a(f"""
    buffer_load_dwordx4 v0, s[16:19], s34 offen lds
    buffer_load_dwordx4 v0, s[16:19], s34 offen offset:1024 lds
    v_lshlrev_b32 v9, 2, v6
    v_mov_b64 v[{FR+16}:{FR+17}], 0
    v_mov_b64 v[{FR+18}:{FR+19}], 0
    v_add_u32 v8, s35, v0
    v_mov_b32 v{FR+20}, {SENT:#x}
    v_mov_b32 v{FR+21}, {SENT:#x}
    v_mov_b32 v{FR+22}, {SENT:#x}
    v_mov_b32 v{FR+23}, {SENT:#x}
    ds_write_b128 v8, v[{FR+20}:{FR+23}]
    ds_write_b128 v8, v[{FR+20}:{FR+23}] offset:1024
    """)
    a(f"""
    s_lshl_b32 s34, s33, 8
    s_add_u32 s34, s34, {FLAGS}
    v_add_u32 v1, s34, v9
    v_add_u32 v8, {FLAGS+1024}, v9
    ds_write_b32 v1, v{FR+16}
    ds_write_b32 v8, v{FR+16}
    s_mul_i32 s35, s33, {HREG}
    s_add_u32 s35, s35, {HREG0}
    s_lshr_b32 s36, s33, 1
    s_and_b32 s37, s33, 1
    s_lshl_b32 s38, s32, 1
    s_add_u32 s38, s38, s36
    s_lshr_b32 s58, s32, 5
    """)
    a("s_lshl_b32 s39, s38, 12")
    srd(a, 20, 8, 4096, off="s39")
    stamp(a, opt, 0, 16, 2, 3)
    DA = 32
    a(f"""
    s_load_dword s40, s[20:21], 0
    s_lshl_b32 s39, s32, 2
    s_load_dword s41, s[10:11], s39
    v_mul_u32_u24 v8, 13108, v6
    v_lshrrev_b32 v8, 16, v8
    v_mul_u32_u24 v7, 5, v8
    v_sub_u32 v7, v6, v7
    v_lshlrev_b32 v8, 6, v8
    v_lshl_add_u32 v{DA+9}, v7, 4, v8
    """)
    a(f"""
    s_mul_i32 s57, s38, {U_STRIDE}
    s_lshl_b32 s45, s37, 10
    s_add_u32 s57, s57, s45
    s_add_u32 s57, s57, {WS_U}
    """)
    for k in range(9):
        a(f"""
        v_add_u32 v7, {64*k}, v6
        v_mul_u32_u24 v10, 937, v7
        v_lshrrev_b32 v10, 16, v10
        v_mul_u32_u24 v11, 70, v10
        v_sub_u32 v7, v7, v11
        v_lshlrev_b32 v7, 4, v7
        v_and_b32 v11, 3, v10
        v_lshl_add_u32 v7, v11, 1, v7
        v_lshrrev_b32 v10, 2, v10
        v_lshl_add_u32 v{DA+k}, v10, 11, v7
        """)
    a(f"""
    v_add_u32 v8, s35, v0
    ds_write_b128 v8, v[{FR+16}:{FR+19}]
    ds_write_b128 v8, v[{FR+16}:{FR+19}] offset:1024
    s_mov_b32 s42, -1
    s_mov_b32 s43, 0
    s_mov_b64 exec, s[42:43]
    ds_write_b128 v8, v[{FR+16}:{FR+19}] offset:2048
    s_mov_b64 exec, -1
    """)
    def conv_dma():
        a("s_mov_b32 s43, 0x0fffffff\ns_mov_b64 exec, s[42:43]")
        for k in range(6):
            if k == 5:
                a("s_mov_b64 exec, 0x7ffff")
            a(f"s_add_u32 m0, s35, {2560 + 960*k}\ns_movk_i32 s44, {768*k}")
            a(f"buffer_load_dwordx4 v{DA+9}, s[20:23], s44 offen lds")
        a("s_mov_b64 exec, -1")
        for k in range(9):
            a(f"s_add_u32 m0, s35, {HT_SZ + 1024*k}")
            if k == 8:
                a("s_mov_b32 s43, 0xffff\ns_mov_b64 exec, s[42:43]")
            else:
                a("s_nop 0")
            a(f"buffer_load_dwordx4 v{DA+k}, s[16:19], s57 offen lds")
        a("s_mov_b64 exec, -1")
    a(f"""
    v_and_b32 v7, 31, v6
    v_lshrrev_b32 v10, 5, v6
    v_and_b32 v11, 3, v7
    v_sub_u32 v11, 3, v11
    v_mul_u32_u24 v11, 1120, v11
    v_lshrrev_b32 v12, 2, v7
    v_lshlrev_b32 v12, 3, v12
    v_sub_u32 v11, v11, v12
    v_lshl_add_u32 v11, v10, 4, v11
    s_add_u32 s45, s35, {HT_SZ + 56}
    v_add_u32 v2, s45, v11
    v_add_u32 v3, 4480, v2
    v_mul_u32_u24 v11, 80, v7
    v_lshl_add_u32 v11, v10, 4, v11
    s_mul_i32 s45, s37, {16*80}
    s_add_u32 s45, s45, s35
    s_add_u32 s45, s45, 80
    v_add_u32 v4, s45, v11
    """)
    a(f"""
    s_lshl_b32 s45, s58, 2
    s_add_u32 s45, s45, s33
    s_lshl_b32 s60, s45, 7
    s_add_u32 s60, s60, {WS_CNT}
    s_lshl_b32 s45, s45, 16
    s_lshl_b32 s46, s59, 8
    s_add_u32 s45, s45, s46
    s_add_u32 s45, s45, {WS_Y}
    v_lshrrev_b32 v10, 4, v6
    v_lshlrev_b32 v10, 13, v10
    v_and_b32 v11, 15, v6
    v_lshl_add_u32 v10, v11, 4, v10
    v_add_u32 v10, s45, v10
    s_lshl_b32 s61, s58, 2
    s_lshr_b32 s45, s59, 3
    s_add_u32 s61, s61, s45
    s_lshl_b32 s61, s61, 7
    s_add_u32 s61, s61, {WS_CNT}
    s_mov_b32 s46, 32768
    s_movk_i32 s47, 4096
    s_mov_b32 s48, 65536
    s_mov_b32 s49, 69632
    s_lshl_b32 s50, s33, 14
    s_add_u32 s50, s50, {WS_WO}
    """)
    def cons_addr(sj, shh):
        a(f"""
        s_lshr_b32 s44, {sj}, 4
        s_lshl_b32 s44, s44, 1
        s_and_b32 s45, {sj}, 1
        s_add_u32 s44, s44, s45
        s_lshl_b32 s44, s44, 2
        s_add_u32 s44, s44, {shh}
        s_lshl_b32 s44, s44, 5
        s_bfe_u32 s45, {sj}, 0x30001
        s_add_u32 s44, s44, s45
        s_lshl_b32 s44, s44, 12
        s_lshl_b32 s45, s58, 7
        v_and_b32 v5, 31, v6
        v_lshrrev_b32 v7, 5, v6
        v_lshlrev_b32 v16, 16, v7
        v_add_u32 v16, s44, v16
        v_lshl_add_u32 v11, v5, 2, s45
        v_lshl_add_u32 v17, v16, 1, v11
        v_add_u32 v16, v16, v11
        s_lshl_b32 s44, s58, 5
        s_add_u32 s44, s44, {sj}
        s_lshl_b32 s44, s44, 13
        s_lshl_b32 s45, {shh}, 6
        s_add_u32 s44, s44, s45
        s_add_u32 s44, s44, {WS_Y}
        v_lshlrev_b32 v11, 8, v5
        v_lshl_add_u32 v11, v7, 5, v11
        v_add_u32 v11, s44, v11
        """)
    cons_addr("s59", "s33")
    srd(a, 24, 4, 2097152)
    srd(a, 28, 12, 4194304)
    srd(a, 64, 12, 4194304)
    QR = 20
    VD = 14
    a(f"""
    v_and_b32 v12, 8, v6
    v_mov_b32 v13, 0x44444444
    v_mov_b32 v14, 0xeeeeeeee
    v_cmp_eq_u32 vcc, 0, v12
    v_bfe_u32 v12, v6, 4, 1
    v_lshrrev_b32 v18, 5, v6
    v_cndmask_b32 v13, v14, v13, vcc
    v_lshlrev_b32 v12, 2, v12
    v_lshl_add_u32 v12, v18, 1, v12
    s_lshl_b32 s45, s32, 3
    v_add_u32 v12, s45, v12
    v_lshlrev_b32 v12, 11, v12
    v_and_b32 v18, 15, v6
    v_lshl_add_u32 v12, v18, 4, v12
    s_lshl_b32 s45, s33, 8
    v_add_u32 v12, s45, v12
    v_mov_b32 v15, 0
    s_mov_b32 s52, {SENT:#x}
    v_add_u32 v{VD}, {PDATA}, v0
    s_mov_b32 s53, 0
    s_mov_b32 s56, 200000
    s_mov_b32 s62, 0xffff0000
    """)
    for r in range(OA, OA + 32, 2):
        a(f"v_mov_b64 v[{r}:{r+1}], 0")
    a(f"""
    s_waitcnt lgkmcnt(0)
    s_lshl_b32 s40, s40, 16
    s_lshl_b32 s45, s41, 16
    s_and_b32 s41, s41, 0xffff0000
    s_cmp_eq_u32 s36, 0
    s_cselect_b32 s41, s45, s41
    v_mov_b32 v28, s40
    v_add_f32 v28, s41, v28
    v_cvt_pk_bf16_f32 v20, v28, v28
    """)
    vm = []
    vdone = [0]
    def vneed(tag):
        k = len(vm) - vm[::-1].index(tag)
        if k > vdone[0]:
            a(f"s_waitcnt vmcnt({len(vm) - k})")
            vdone[0] = k
    def hstamp(slot):
        if opt.get("time"):
            stamp(a, opt, slot, 16, 2, 3)
            vm.append("stamp")
    def wo_load(step, j):
        if j % 4 == 0:
            a(f"s_add_u32 s51, s50, {step*65536 + (j//4)*4096}")
        r = WO + 64 * (step % 2) + 4 * j
        a(f"buffer_load_dwordx4 v[{r}:{r+3}], v0, s[16:19], s51 offen offset:{(j%4)*1024}")
        vm.append(f"wo{step}")
    def q_load(i):
        so = "s46" if i >= 4 else "0"
        a(f"buffer_load_dword v{QR+i}, v16, s[24:27], {so} offen offset:{(i%4)*1024}")
        vm.append("q2")
    def rd(it):
        f = FR + 16 * (it % 2)
        a(f"ds_read2_b64 v[{f}:{f+3}], v3 offset0:{4*it} offset1:{4*it+1}")
        bo = (it // 2) * 80 + (it & 1) * 32
        a(f"ds_read_b128 v[{f+4}:{f+7}], v4 offset:{bo}")
        a(f"ds_read_b128 v[{f+8}:{f+11}], v4 offset:{bo+2560}")
        a(f"ds_read2_b64 v[{f+12}:{f+15}], v2 offset0:{4*it} offset1:{4*it+1}")
    def nops(n):
        while n > 0:
            a(f"s_nop {min(n, 16) - 1}")
            n -= 16
    def conv_chunk(i0, i1, extra):
        if i0 == 0:
            vneed("conv")
            a("v_mov_b32 v5, s35\nds_write_b16 v5, v20 offset:2560")
            hstamp(1)
        rd(i0)
        ng = 3 * (i1 - i0)
        g = 0
        for it in range(i0, i1):
            if it < i1 - 1:
                rd(it + 1)
                a("s_waitcnt lgkmcnt(4)")
            else:
                a("s_waitcnt lgkmcnt(0)")
            f = FR + 16 * (it % 2)
            c0 = "0" if it == 0 else vr(CA, 16)
            c1 = "0" if it == 0 else vr(CA + 16, 16)
            mf = [f"v_mfma_f32_32x32x16_bf16 {vr(CA+16,16)}, v[{f}:{f+3}], v[{f+8}:{f+11}], {c1}",
                  f"v_mfma_f32_32x32x16_bf16 {vr(CA,16)}, v[{f}:{f+3}], v[{f+4}:{f+7}], {c0}",
                  f"v_mfma_f32_32x32x16_bf16 {vr(CA+16,16)}, v[{f+12}:{f+15}], v[{f+4}:{f+7}], {vr(CA+16,16)}"]
            for m in mf:
                a(m)
                lo = g * len(extra) // ng; hi = (g + 1) * len(extra) // ng
                for x in extra[lo:hi]:
                    x()
                g += 1
                nops(max(1, gap + 1 - (hi - lo)))
    YD = CA
    AT = CA + 8
    YL = CA + 16
    def exchange():
        hstamp(4)
        a(f"s_nop 7\ns_nop 3\nv_add_u32 v5, s35, v0")
        for k in range(8):
            a(f"ds_write_b128 v5, v[{CA+4*k}:{CA+4*k+3}] offset:{1024*k}")
        a(f"""
        v_mov_b32 v7, 1
        ds_write_b32 v1, v7
        v_and_b32 v8, 3, v6
        v_lshlrev_b32 v8, 8, v8
        v_add_u32 v8, {FLAGS}, v8
        s_lshl_b32 s45, s33, 11
        s_add_u32 s45, s45, {HREG0}
        v_add_u32 v19, s45, v0
        XPOLL:
        ds_read_b32 v18, v8
        {safe("XPOLLX")}
        s_waitcnt lgkmcnt(0)
        v_cmp_eq_u32 vcc, 0, v18
        s_cbranch_vccnz XPOLL
        XPOLLX:
        """)
        for hh in range(4):
            for k in range(2):
                r = FR + 8 * hh + 4 * k
                a(f"ds_read_b128 v[{r}:{r+3}], v19 offset:{hh*HREG + 1024*k}")
        a("s_waitcnt lgkmcnt(4)")
        for i in range(0, 8, 2):
            a(f"v_pk_add_f32 v[{FR+i}:{FR+i+1}], v[{FR+i}:{FR+i+1}], v[{FR+8+i}:{FR+9+i}]")
        a("s_waitcnt lgkmcnt(0)")
        for i in range(0, 8, 2):
            a(f"v_pk_add_f32 v[{FR+16+i}:{FR+17+i}], v[{FR+16+i}:{FR+17+i}], v[{FR+24+i}:{FR+25+i}]")
        for g in range(2):
            for i in range(4 * g, 4 * g + 4):
                a(f"v_cvt_pk_bf16_f32 v{YD+i}, v{FR+i}, v{FR+16+i}")
            a(f"buffer_store_dwordx4 v[{YD+4*g}:{YD+4*g+3}], v10, s[16:19], {'s46' if g else '0'} offen sc1")
            vm.append("ys")
        hstamp(2)
    def arrive():
        a(f"v_mov_b64 v[{AT}:{AT+1}], 1")
        vneed("ys")
        a(f"""
        s_mov_b64 exec, 1
        buffer_atomic_add_x2 v[{AT}:{AT+1}], off, s[16:19], s60 sc0 sc1
        s_mov_b64 exec, -1
        """)
        vm.append("atom")
    def poll_issue():
        a(f"buffer_load_dword v{AT+2}, off, s[16:19], s61 sc1")
        vm.append("poll")
    def y_loads():
        for k in range(2):
            a(f"buffer_load_dwordx4 v[{YL+4*k}:{YL+4*k+3}], v11, s[16:19], 0 offen offset:{16*k} sc1")
            vm.append("yl")
    def y_check():
        vneed("poll")
        a(f"""
        v_readfirstlane_b32 s44, v{AT+2}
        s_cmp_eq_u32 s44, 32
        s_cbranch_scc0 YSLOW
        YOK:
        """)
        hstamp(5)
        y_loads()
    def finish(srdo, track=True):
        for i in range(8):
            t = FR + 4 * (i % 4)
            a(f"""
            v_lshlrev_b32 v{t}, 16, v{YL+i}
            v_and_b32 v{t+1}, s62, v{YL+i}
            v_lshlrev_b32 v{t+2}, 16, v{QR+i}
            v_and_b32 v{t+3}, s62, v{QR+i}
            v_pk_mul_f32 v[{t}:{t+1}], v[{t}:{t+1}], v[{t+2}:{t+3}]
            v_cvt_pk_bf16_f32 v{YL+8+i}, v{t}, v{t+1}
            """)
            so = ["0", "s47", "s48", "s49"][i // 2]
            if not opt.get("nost"):
                a(f"buffer_store_dword v{YL+8+i}, v17, s[{srdo}:{srdo+3}], {so} offen offset:{1024 + 2048*(i%2)}{SCB}")
                if track:
                    vm.append("st")
    def last_check():
        vneed("atom")
        a(f"""
        v_readfirstlane_b32 s44, v{AT}
        v_readfirstlane_b32 s63, v{AT+1}
        s_cmp_eq_u32 s44, 31
        s_cselect_b32 s63, s63, 0
        s_cmp_lg_u32 s63, 0
        s_cbranch_scc1 LSLOW
        LOK:
        """)
    T = FR
    AF = 28
    L = [5, 7, 8, 18]
    def reduce_(step):
        for w in range(4):
            a(f"ds_read_b32 v{L[w]}, v9 offset:{1024*step+256*w}")
        for w in range(4):
            a(f"ds_read_b128 v[{T+8*w}:{T+8*w+3}], v{VD} offset:{8192*step+2048*w}")
            a(f"ds_read_b128 v[{T+8*w+4}:{T+8*w+7}], v{VD} offset:{8192*step+2048*w+1024}")
        a("s_waitcnt lgkmcnt(8)")
        a(f"""
        v_add_f32 v{L[0]}, v{L[0]}, v{L[1]}
        v_add_f32 v{L[2]}, v{L[2]}, v{L[3]}
        v_add_f32 v{L[0]}, v{L[0]}, v{L[2]}
        v_rcp_f32 v8, v{L[0]}
        s_waitcnt lgkmcnt(4)
        """)
        def pk(op, d, x, y, m=""):
            a(f"v_pk_{op}_f32 v[{d}:{d+1}], v[{x}:{x+1}], v[{y}:{y+1}]{m}")
        for i in range(0, 8, 2):
            pk("add", T + i, T + i, T + 8 + i)
        a(f"v_max3_f32 v15, v15, v{L[0]}, v8")
        a("s_waitcnt lgkmcnt(0)")
        for i in range(0, 8, 2):
            pk("add", T + 16 + i, T + 16 + i, T + 24 + i)
        for i in range(0, 8, 2):
            pk("add", T + i, T + i, T + 16 + i)
        for i in range(0, 8, 2):
            pk("mul", T + i, T + i, 8, " op_sel_hi:[1,0]")
        for i in range(4):
            a(f"v_cvt_pk_bf16_f32 v{AF+i}, v{T+2*i}, v{T+2*i+1}")
    def ostep(step):
        if step < 7:
            pn = "\n".join(["s_nop 15"] * opt.get("pn", 4))
            a(f"""
            s_branch POLL{step}
            POLLW{step}:
            {pn}
            POLL{step}:
            ds_read_b32 v18, v0 offset:{1024*step}
            {safe(f"POLLX{step}")}
            s_waitcnt lgkmcnt(0)
            v_cmp_eq_u32 vcc, s52, v18
            s_cbranch_vccnz POLLW{step}
            POLLX{step}:
            """)
        else:
            vneed("wo7")
            a("s_barrier")
        reduce_(step)
        vneed(f"wo{step}")
        a("s_nop 1")
        for t in range(8):
            b = WO + 64 * (step % 2) + 8 * t
            a(f"v_smfmac_f32_16x16x64_bf16 v[{OA+4*t}:{OA+4*t+3}], v[{AF}:{AF+3}], v[{b}:{b+7}], v13")
            if step < 6:
                for j in (2 * t, 2 * t + 1):
                    wo_load(step + 2, j)
            if step < 7 and opt.get("ogap", 3) >= 0:
                a(f"s_nop {opt.get('ogap', 3)}")
        if opt.get("time", 0) > 1:
            hstamp(6 + step)
    sched = opt.get("sched", "B,D,C8/W0/W1,O0,C8,O1,C8,O2,C8/Q,X,O3,A,O4,P,O5,Y,O6,F,L,O7").split(",")
    it = 0
    def thunks(tok):
        k, n = tok[0], (int(tok[1:]) if len(tok) > 1 else 0)
        if k == "W":
            return [(lambda j=j: wo_load(n, j)) for j in range(16)]
        if k == "Q":
            return [(lambda i=i: q_load(i)) for i in range(8)]
        raise ValueError(tok)
    for tok in sched:
        sub = tok.split("/")
        tok = sub[0]
        k, n = tok[0], (int(tok[1:]) if len(tok) > 1 else 0)
        if k in "WQ":
            for x in thunks(tok):
                x()
        elif k == "B":
            a(f"s_waitcnt vmcnt({len(vm)}) lgkmcnt(0)\ns_barrier")
            if opt.get("nohelp"):
                a("s_barrier\ns_barrier\ns_endpgm")
        elif k == "D":
            conv_dma()
            vm.extend(["conv"] * 15)
        elif k == "O":
            ostep(n)
        elif k == "C":
            conv_chunk(it, it + n, sum((thunks(x) for x in sub[1:]), []))
            it += n
        elif k == "X":
            assert it == 32
            exchange()
        elif k == "A":
            arrive()
        elif k == "P":
            poll_issue()
        elif k == "Y":
            y_check()
        elif k == "F":
            vneed("q2"); vneed("yl")
            finish(64)
        elif k == "L":
            last_check()
        elif k == "T":
            hstamp(n)
        else:
            raise ValueError(tok)
    a("OFINAL:\ns_nop 7")
    for t in range(8):
        for r in range(2):
            x = OA + 4 * t + r
            a(f"v_permlane32_swap_b32 v{x}, v{x+2}")
    for t in range(8):
        x = OA + 4 * t
        a(f"v_pk_add_f32 v[{x}:{x+1}], v[{x}:{x+1}], v[{x+2}:{x+3}]")
    for r in range(2):
        for d in range(4):
            a(f"v_cvt_pk_bf16_f32 v{T+4*r+d}, v{OA+8*d+r}, v{OA+8*d+4+r}")
        a(f"buffer_store_dwordx4 v[{T+4*r}:{T+4*r+3}], v12, s[28:31], 0 offen offset:{2048*r}{SCA}")
    stamp(a, opt, 3, 16, 2, 3)
    a("s_cmp_lg_u32 s53, 0\ns_cbranch_scc1 K2_END")
    for t in range(1, 8):
        a(f"v_pk_add_f32 v[{OA}:{OA+1}], v[{OA}:{OA+1}], v[{OA+4*t}:{OA+4*t+1}]")
    force = opt.get("force_fb")
    a(f"""
    v_add_f32 v{OA}, v{OA}, v{OA+1}
    v_mov_b32 v18, {f32bits(2.0**30):#x}
    v_mov_b32 v19, 0x207
    v_cmp_class_f32 vcc, v{OA}, v19
    v_cmp_nle_f32 s[54:55], v15, v18
    s_or_b64 vcc, vcc, s[54:55]
    """)
    if force:
        a("s_mov_b64 vcc, -1")
    a(f"""
    s_cbranch_vccz K2_HOK
    v_mov_b32 v18, {FLAGS+1024}
    v_mov_b32 v19, 1
    ds_write_b32 v18, v19
    K2_HOK:
    s_waitcnt lgkmcnt(0)
    s_barrier
    v_mov_b32 v18, {FLAGS+1024}
    ds_read_b32 v19, v18
    s_waitcnt lgkmcnt(0)
    v_readfirstlane_b32 s54, v19
    s_cmp_eq_u32 s54, 0
    s_cbranch_scc1 K2_END
    s_setprio 0
    s_waitcnt vmcnt(0)
    """)
    for r in range(OA, OA + 32, 2):
        a(f"v_mov_b64 v[{r}:{r+1}], 0")
    for k in range(9):
        a("s_barrier")
    a("s_mov_b32 s53, 0\nFB_O:")
    for j in range(16):
        wo_load(0, j)
    reduce_(0)
    a("s_waitcnt vmcnt(0)\ns_nop 0")
    for t in range(8):
        b = WO + 8 * t
        a(f"v_smfmac_f32_16x16x64_bf16 v[{OA+4*t}:{OA+4*t+3}], v[{AF}:{AF+3}], v[{b}:{b+7}], v13")
    a(f"""
    v_add_u32 v9, 1024, v9
    v_add_u32 v{VD}, 8192, v{VD}
    s_add_u32 s50, s50, 65536
    s_add_u32 s53, s53, 1
    s_cmp_lt_u32 s53, 8
    s_cbranch_scc1 FB_O
    s_branch OFINAL
    """)
    a(f"""
    YSLOW:
    s_movk_i32 s45, {opt.get("ytmo", 200)}
    YSLOW1:
    s_sub_u32 s45, s45, 1
    s_cmp_lt_i32 s45, 0
    s_cbranch_scc1 YGIVE
    buffer_load_dword v{AT+2}, off, s[16:19], s61 sc1
    s_waitcnt vmcnt(0)
    v_readfirstlane_b32 s44, v{AT+2}
    s_cmp_eq_u32 s44, 32
    s_cbranch_scc0 YSLOW1
    s_branch YOK
    YGIVE:
    s_and_b32 s44, s59, 7
    s_lshl_b32 s44, s44, 2
    s_add_u32 s44, s44, s33
    s_lshl_b32 s44, 1, s44
    v_mov_b32 v{AT+2}, 0
    v_mov_b32 v{AT+3}, s44
    s_mov_b64 exec, 1
    buffer_atomic_or_x2 v[{AT+2}:{AT+3}], off, s[16:19], s61 sc0 sc1
    s_mov_b64 exec, -1
    s_waitcnt vmcnt(0)
    v_readfirstlane_b32 s44, v{AT+2}
    s_cmp_eq_u32 s44, 32
    s_cbranch_scc1 YOK
    s_add_u32 s64, s14, {WS_DUMMY}
    s_addc_u32 s65, s15, 0
    s_branch YOK
    LSLOW:
    s_ff1_i32_b32 s68, s63
    s_bitset0_b32 s63, s68
    s_lshr_b32 s69, s68, 2
    s_lshl_b32 s70, s33, 3
    s_add_u32 s69, s69, s70
    s_and_b32 s68, s68, 3
    s_waitcnt vmcnt(0)
    """)
    cons_addr("s69", "s68")
    for i in range(8):
        q_load(i)
    y_loads()
    a("s_waitcnt vmcnt(0)")
    finish(28, False)
    a(f"""
    s_cmp_lg_u32 s63, 0
    s_cbranch_scc1 LSLOW
    s_waitcnt vmcnt(0)
    s_branch LOK
    """)

HEADER = open("cdna_kernels/" + NAME + ".s.ref").read().split("; Override launch")[0]

def gen(opt):
    opt = dict(opt)
    XP.update(opt)
    opt.setdefault("wsrec", WS_END)
    if opt.get("time"):
        opt["wsrec"] = 0x800000
    o1 = dict(opt); o1["tv"] = (132, 133); o1["tbase"] = WS_TIME
    o2 = dict(opt); o2["tv"] = (18, 19); o2["tbase"] = WS_TIME + 0x20000
    s = HEADER
    s += f"; @launch kernel=k1_kernel grid=(256,1,1) block=(512,1,1) lds={K1_LDS}\n"
    s += f"; @launch kernel={NAME}_kernel grid=(256,1,1) block=(512,1,1) lds={K2_LDS}\n"
    s += '.amdgcn_target "amdgcn-amd-amdhsa--gfx950"\n.text\n'
    s += gen_k1(o1) + gen_k2(o2)
    s += '.section .rodata,"a"\n' + kdesc("k1_kernel", 136) + kdesc(f"{NAME}_kernel", 256)
    return s

if __name__ == "__main__":
    opt = {}
    out = "cdna_kernels/" + NAME + ".s"
    for x in sys.argv[1:]:
        k, v = x.split("=")
        if k == "out":
            out = v
        else:
            opt[k] = int(v) if v.lstrip("-").isdigit() else v
    open(out, "w").write(gen(opt))
```
